```python
import torch

def _softmax(x, axis=-1):
    return torch.softmax(x, dim=axis)
def _gelu(x):
    return torch.nn.functional.gelu(x, approximate="tanh")
def _silu(x):
    return torch.nn.functional.silu(x)
def _sigmoid(x):
    return torch.sigmoid(x)
def _layernorm(x, axis=-1, eps=1e-5):
    m = x.mean(dim=axis, keepdim=True)
    v = x.var(dim=axis, keepdim=True, unbiased=False)
    return (x - m) / torch.sqrt(v + eps)
def _scatter_add(tgt, idx, src, axis=0):
    return tgt.clone().index_add_(axis, idx, src)
def _segment_sum(src, seg, n):
    out = torch.zeros((n,) + src.shape[1:], dtype=src.dtype)
    return out.index_add_(0, seg, src)
def _pad(x, pw):
    flat = tuple(v for pair in reversed(pw) for v in pair)
    return torch.nn.functional.pad(x, flat)

kernel_name = 'parallel_sum__grouped_kv_mqa__dense_activation_mish__prompt'

def setup_inputs():

    _w = (lambda a: (lambda t: t.to(torch.bfloat16) if t.is_floating_point() else t)(torch.as_tensor(a)))
    def _A_setup():
        B, S, D, H = 1, 2048, 512, 32
        Dh = D // H
        return {
            "x": _w((lambda *s: torch.randn(*s, dtype=torch.bfloat16) * 0.05)(B, S, D)),
            "wq": _w((lambda *s: torch.randn(*s, dtype=torch.bfloat16) * 0.05)(D, H * Dh)),
            "wk": _w((lambda *s: torch.randn(*s, dtype=torch.bfloat16) * 0.05)(D, Dh)),
            "wv": _w((lambda *s: torch.randn(*s, dtype=torch.bfloat16) * 0.05)(D, Dh)),
            "wo": _w((lambda *s: torch.randn(*s, dtype=torch.bfloat16) * 0.05)(H * Dh, D)),
        }
    _A_in = _A_setup()

    def _B_setup():
        B, S, D, F = 1, 2048, 512, 1376
        return {
            "x": _w((lambda *s: torch.randn(*s, dtype=torch.bfloat16) * 0.05)(B, S, D)),
            "w1": _w((lambda *s: torch.randn(*s, dtype=torch.bfloat16) * 0.8)(D, F) * (D ** -0.5)),
            "b1": _w((lambda *s: torch.randn(*s, dtype=torch.bfloat16) * 0.4)(F)),
            "w2": _w((lambda *s: torch.randn(*s, dtype=torch.bfloat16) * 0.4)(F, D) * (F ** -0.5)),
        }
    _B_in = _B_setup()

    return {
        "A_x": _A_in["x"],
        "A_wq": _A_in["wq"],
        "A_wk": _A_in["wk"],
        "A_wv": _A_in["wv"],
        "A_wo": _A_in["wo"],
        "B_x": _B_in["x"],
        "B_w1": _B_in["w1"],
        "B_b1": _B_in["b1"],
        "B_w2": _B_in["w2"],
    }

def reference(A_x, A_wq, A_wk, A_wv, A_wo, B_x, B_w1, B_b1, B_w2):
    def _A_ref(x, wq, wk, wv, wo):
        B, S, D = x.shape
        H = 32
        Dh = D // H
        q = (lambda x, *d: x.permute(*d))((x @ wq).reshape(B, S, H, Dh), 0, 2, 1, 3)
        k = x @ wk
        v = x @ wv
        scores = torch.einsum("bhqd,bkd->bhqk", q, k) * (Dh ** -0.5)
        p = _softmax(scores, axis=-1)
        o = torch.einsum("bhqk,bkd->bhqd", p, v)
        return (lambda x, *d: x.permute(*d))(o, 0, 2, 1, 3).reshape(B, S, H * Dh) @ wo

    def _B_ref(x, w1, b1, w2):
        h = torch.einsum("bsd,df->bsf", x, w1) + b1
        sp = torch.log1p(torch.exp(-torch.abs(h))) + torch.where(h > 0, h, torch.zeros_like(h))
        act = h * torch.tanh(sp)
        return torch.einsum("bsf,fd->bsd", act, w2)

    x = A_x
    xn = _layernorm(x, axis=-1)
    return x + _A_ref(xn, A_wq, A_wk, A_wv, A_wo) + _B_ref(xn, B_w1, B_b1, B_w2)
```

```python
NAME = "parallel_sum__grouped_kv_mqa__dense_activation_mish__prompt"

class Asm:
    def __init__(self):
        self.lines = []
        self.uid = 0
    def __call__(self, s=""):
        for l in s.split("\n"):
            l = l.strip()
            if not l:
                continue
            if l.endswith(":") or l.startswith("."):
                self.lines.append(l)
            else:
                self.lines.append("    " + l)
    def c(self, s):
        self.lines.append("    ; " + s)
    def label(self, base):
        self.uid += 1
        return f"L_{base}_{self.uid}"
    def text(self):
        return "\n".join(self.lines) + "\n"

def vr(a, n=1):
    return f"v{a}" if n == 1 else f"v[{a}:{a+n-1}]"
def sr(a, n=1):
    return f"s{a}" if n == 1 else f"s[{a}:{a+n-1}]"

def srd(A, d, base, nbytes):
    A(f"s_mov_b32 s{d}, s{base}")
    A(f"s_mov_b32 s{d+1}, s{base+1}")
    A(f"s_mov_b32 s{d+2}, {nbytes}")
    A(f"s_mov_b32 s{d+3}, 0x00020000")

def f2u(x):
    import struct
    return struct.unpack("<I", struct.pack("<f", x))[0]

def kernel_head(A, name):
    A(".text")
    A(f".globl {name}")
    A(".p2align 8")
    A(f".type {name},@function")
    A(f"{name}:")

def kernel_desc(A, name, vgpr, sgpr=102, accum=None):
    accum = accum or ((vgpr + 3) // 4 * 4)
    A('.section .rodata,"a"')
    A(".p2align 6")
    A(f".amdhsa_kernel {name}")
    A(f"  .amdhsa_next_free_vgpr {vgpr}")
    A(f"  .amdhsa_next_free_sgpr {sgpr}")
    A(f"  .amdhsa_accum_offset {accum}")
    A("  .amdhsa_group_segment_fixed_size 0")
    A("  .amdhsa_kernarg_size 96")
    A("  .amdhsa_user_sgpr_count 2")
    A("  .amdhsa_user_sgpr_kernarg_segment_ptr 1")
    A("  .amdhsa_system_sgpr_workgroup_id_x 1")
    A(".end_amdhsa_kernel")

HEADER = """; Kernarg layout for this problem (96 bytes, ptrs only, base s[0:1]):
"""
```

```python
import sys, math
from asmlib import *

LOG2E = 1.4426950408889634
WS_Q, WS_KV, WS_KMAX, WS_O, WS_H = 0x0, 0x200000, 0x230000, 0x300000, 0x600000
WS_BYTES = 0x1000000
KVB = 2112
XC_TT = 64*528
RSTD = 0
XC = 256
RING = XC + 2*XC_TT
K1_LDS = RING + 7*8192 + 32768
THRESH2 = 3600.0
opts = dict(a.split("=") for a in sys.argv[1:] if "=" in a)
if opts.get("slow") == "1":
    THRESH2 = -1.0

def wg_decode(A, done):
    A(f"s_cmp_ge_u32 s2, 256")
    A(f"s_cbranch_scc1 {done}")
    A("v_lshrrev_b32 v2, 6, v0")
    A("v_and_b32 v1, 63, v0")
    A("s_and_b32 s6, s2, 7")
    A("v_readfirstlane_b32 s3, v2")
    A("s_lshr_b32 s7, s2, 3")
    m = opts.get("map", "a")
    if m == "a":
        A("s_and_b32 s4, s7, 7")
        A("s_lshl_b32 s4, s4, 2")
        A("s_and_b32 s5, s6, 3")
        A("s_add_u32 s4, s4, s5")
        A("s_lshr_b32 s5, s7, 3")
        A("s_lshl_b32 s5, s5, 1")
        A("s_lshr_b32 s6, s6, 2")
        A("s_add_u32 s5, s5, s6")
    elif m == "g":
        A("s_lshr_b32 s4, s7, 3")
        A("s_lshl_b32 s4, s4, 3")
        A("s_add_u32 s4, s4, s6")
        A("s_and_b32 s5, s7, 7")
    elif m == "j":
        A("s_mov_b32 s4, s7")
        A("s_mov_b32 s5, s6")

def tr_addr(A, d, t, permuted):
    A(f"v_lshrrev_b32 v{d}, 5, v1")
    A(f"v_lshlrev_b32 v{d}, {8 if permuted else 9}, v{d}")
    A(f"v_bfe_u32 v{t}, v1, 4, 1")
    A(f"v_lshl_add_u32 v{d}, v{t}, 5, v{d}")
    A(f"v_bfe_u32 v{t}, v1, 2, 2")
    A(f"v_lshl_add_u32 v{d}, v{t}, 6, v{d}")
    A(f"v_and_b32 v{t}, 3, v1")
    A(f"v_lshl_add_u32 v{d}, v{t}, 3, v{d}")

def mish_pairs(A, acc, rs, bias, out, T, sL2E):
    for q in range(4):
        h = [acc+4*q, acc+4*q+2]
        u = [T, T+2]; d = [T+4, T+6]
        for i in range(2):
            A(f"v_pk_fma_f32 {vr(h[i],2)}, {vr(h[i],2)}, {vr(rs,2)}, {vr(bias+4*q+2*i,2)} op_sel_hi:[1,0,1]")
        for i in range(2):
            A(f"v_pk_mul_f32 {vr(u[i],2)}, {vr(h[i],2)}, {sr(sL2E,2)}")
        for i in range(2):
            A(f"v_exp_f32 v{u[i]}, v{u[i]}")
            A(f"v_exp_f32 v{u[i]+1}, v{u[i]+1}")
        A("s_nop 0")
        A(f"v_pk_add_f32 {vr(d[0],2)}, {vr(u[0],2)}, 2.0 op_sel_hi:[1,0]")
        A(f"v_pk_add_f32 {vr(d[1],2)}, {vr(u[1],2)}, 2.0 op_sel_hi:[1,0]")
        for i in range(2):
            A(f"v_pk_fma_f32 {vr(d[i],2)}, {vr(d[i],2)}, {vr(u[i],2)}, 2.0 op_sel_hi:[1,1,0]")
        for i in range(2):
            A(f"v_rcp_f32 v{d[i]}, v{d[i]}")
            A(f"v_rcp_f32 v{d[i]+1}, v{d[i]+1}")
        A("s_nop 0")
        for i in range(2):
            A(f"v_pk_fma_f32 {vr(d[i],2)}, {vr(d[i],2)}, -2.0, 1.0 op_sel_hi:[1,0,0]")
        for i in range(2):
            A(f"v_pk_mul_f32 {vr(h[i],2)}, {vr(h[i],2)}, {vr(d[i],2)}")
        for i in range(2):
            A(f"v_cvt_pk_bf16_f32 v{out+2*q+i}, v{h[i]}, v{h[i]+1}")

def k1(A):
    name = "k1_kernel"
    kernel_head(A, name)
    done = "L_k1_done"
    wg_decode(A, done)
    A("s_load_dwordx8 s[32:39], s[0:1], 0")
    A("s_load_dwordx4 s[40:43], s[0:1], 48")
    A("s_load_dwordx2 s[44:45], s[0:1], 88")
    A("s_mul_i32 s6, s5, 6")
    A("s_mul_i32 s7, s5, 5")
    A("s_add_u32 s7, s7, 3")
    A("s_min_u32 s6, s6, s7")
    A("s_add_u32 s28, s6, s3")
    A("s_sub_u32 s28, s28, 2")
    A("s_mov_b32 s24, 1")
    A("s_cmp_lt_u32 s3, 2")
    A("s_cselect_b32 s24, 0, s24")
    A("s_cselect_b32 s28, s3, s28")
    lr = A.label("role")
    A("s_cmp_lg_u32 s3, 7")
    A(f"s_cbranch_scc1 {lr}")
    A("s_cmp_lt_u32 s5, 3")
    A(f"s_cbranch_scc1 {lr}")
    A("s_cmp_eq_u32 s5, 3")
    A("s_cselect_b32 s24, 3, 2")
    A("s_sub_u32 s28, s5, 4")
    A(f"{lr}:")
    A("s_lshl_b32 s6, s4, 6")
    A("s_lshl_b32 s7, s3, 3")
    A("s_add_u32 s6, s6, s7")
    A("v_lshrrev_b32 v2, 3, v1")
    A("v_add_u32 v2, s6, v2")
    A("v_lshlrev_b32 v2, 10, v2")
    A("v_and_b32 v8, 7, v1")
    A("v_lshl_add_u32 v2, v8, 4, v2")
    A("v_lshrrev_b32 v9, 3, v1")
    A("v_add_u32 v9, s7, v9")
    A("v_and_b32 v7, 31, v9")
    A("v_lshlrev_b32 v7, 4, v7")
    A("v_mul_u32_u24 v8, 528, v8")
    A("v_add_u32 v7, v7, v8")
    A("s_lshr_b32 s6, s3, 2")
    A(f"s_mul_i32 s6, s6, {XC_TT}")
    A(f"s_add_u32 s6, s6, {XC}")
    A("v_add_u32 v7, s6, v7")
    A(f"v_lshlrev_b32 v9, 2, v9")
    A("s_waitcnt lgkmcnt(0)")
    srd(A, 8, 32, 2097152)
    X = 24
    for i in range(8):
        A(f"buffer_load_dwordx4 {vr(X+4*i,4)}, v2, s[8:11], 0 offen offset:{128*i}")
    srd(A, 20, 44, WS_BYTES)
    A("s_cmp_eq_u32 s24, 0")
    A("s_cselect_b32 s12, s34, s40")
    A("s_cselect_b32 s13, s35, s41")
    A(f"s_mov_b32 s14, {512*2752}")
    A(f"s_cselect_b32 s14, {512*1024}, s14")
    A(f"s_mov_b32 s26, 2752")
    A(f"s_cselect_b32 s26, 1024, s26")
    A("s_mov_b32 s16, s42")
    A("s_mov_b32 s17, s43")
    A("s_mov_b32 s18, 2752")
    A("s_cmp_eq_u32 s24, 2")
    A("s_cselect_b32 s12, s36, s12")
    A("s_cselect_b32 s13, s37, s13")
    A("s_cselect_b32 s14, 16384, s14")
    A("s_cselect_b32 s16, s38, s16")
    A("s_cselect_b32 s17, s39, s17")
    A("s_cselect_b32 s18, 16384, s18")
    A("s_mov_b32 s15, 0x00020000")
    A("s_mov_b32 s19, 0x00020000")
    A("s_lshl_b32 s27, s3, 13")
    A(f"s_add_u32 s27, s27, {RING}")
    A("s_lshl_b32 s6, s28, 6")
    A("s_lshl_b32 s7, s5, 7")
    A("s_cmp_eq_u32 s24, 0")
    A("s_cselect_b32 s7, s7, 0")
    A("s_add_u32 s6, s6, s7")
    A("v_lshrrev_b32 v3, 2, v1")
    A("v_mul_lo_u32 v3, v3, s26")
    A("v_and_b32 v8, 3, v1")
    A("v_lshl_add_u32 v3, v8, 4, v3")
    A("v_add_u32 v3, s6, v3")
    A("s_lshl_b32 s26, s26, 4")
    A("s_mov_b32 s25, 0")
    lkv, lidle, lln = "L_k1_pre_kv", "L_k1_pre_idle", "L_k1_ln"
    A("s_cmp_eq_u32 s24, 2")
    A(f"s_cbranch_scc1 {lkv}")
    A("s_cmp_eq_u32 s24, 3")
    A(f"s_cbranch_scc1 {lidle}")
    R = 8
    A("v_lshrrev_b32 v8, 5, v1")
    A("v_lshlrev_b32 v8, 3, v8")
    A("s_lshl_b32 s6, s28, 6")
    A("v_add_u32 v8, s6, v8")
    for g in range(4):
        A(f"buffer_load_dwordx2 {vr(56+2*g,2)}, v8, s[16:19], 0 offen offset:{16*g}")
    for k in range(R):
        A(f"s_add_u32 m0, s27, {1024*k}")
        A("s_nop 0")
        A(f"buffer_load_dwordx4 v3, s[12:15], s25 offen lds")
        A("s_add_u32 s25, s25, s26")
    A(f"s_waitcnt vmcnt({4+R})")
    A(f"s_branch {lln}")
    A(f"{lkv}:")
    A("v_lshlrev_b32 v3, 4, v1")
    for k in range(16):
        A(f"s_add_u32 m0, s27, {1024*k}")
        A("s_nop 0")
        A(f"buffer_load_dwordx4 v3, s[12:15], s25 offen lds")
        A(f"s_add_u32 m0, s27, {16384+1024*k}")
        A("s_nop 0")
        A(f"buffer_load_dwordx4 v3, s[16:19], s25 offen lds")
        A("s_add_u32 s25, s25, 1024")
    A("s_waitcnt vmcnt(32)")
    A(f"s_branch {lln}")
    A(f"{lidle}:")
    A("s_waitcnt vmcnt(0)")
    A(f"{lln}:")
    A("s_mov_b32 s46, 0x3f803f80")
    A("s_mov_b32 s47, 0x00003f80")
    A("s_mov_b32 s48, 0x3f800000")
    for r in range(32):
        a = 18 + (r & 3)
        A(f"v_dot2_f32_bf16 v{a}, v{X+r}, s46, {'0' if r < 4 else 'v%d' % a}")
    A("s_nop 2")
    A("v_add_f32 v18, v18, v19")
    A("v_add_f32 v20, v20, v21")
    A("v_add_f32 v18, v18, v20")
    def red8(v):
        for m in ("quad_perm:[1,0,3,2]", "quad_perm:[2,3,0,1]", "row_half_mirror"):
            A("s_nop 1")
            A(f"v_add_f32_dpp v{v}, v{v}, v{v} {m} row_mask:0xf bank_mask:0xf")
    red8(18)
    A(f"v_mul_f32 v22, {hex(f2u(1/512))}, v18")
    T = 10
    for r in range(34):
        if r < 32:
            t = T + 2*(r & 3)
            A(f"v_dot2_f32_bf16 v{t}, v{X+r}, s47, v22 neg_lo:[0,0,1]")
            A(f"v_dot2_f32_bf16 v{t+1}, v{X+r}, s48, v22 neg_lo:[0,0,1]")
        else:
            A("s_nop 1")
        if r >= 2:
            q = r - 2
            t = T + 2*(q & 3)
            A(f"v_cvt_pk_bf16_f32 v{X+q}, v{t}, v{t+1}")
            if q & 3 == 3:
                i = q >> 2
                A(f"ds_write_b128 v7, {vr(X+4*i,4)} offset:{8*528*i}")
    for r in range(32):
        a = 18 + (r & 3)
        A(f"v_dot2_f32_bf16 v{a}, v{X+r}, v{X+r}, {'0' if r < 4 else 'v%d' % a}")
    A("s_nop 2")
    A("v_add_f32 v18, v18, v19")
    A("v_add_f32 v20, v20, v21")
    A("v_add_f32 v18, v18, v20")
    red8(18)
    A(f"v_mov_b32 v19, {hex(f2u(1e-5))}")
    A(f"v_fmac_f32 v19, {hex(f2u(1/512))}, v18")
    A("v_rsq_f32 v19, v19")
    A("s_nop 0")
    A(f"ds_write_b32 v9, v19 offset:{RSTD}")
    A("v_lshrrev_b32 v5, 5, v1")
    A("v_mul_u32_u24 v5, 528, v5")
    A("v_and_b32 v8, 31, v1")
    A("v_lshl_add_u32 v5, v8, 4, v5")
    A(f"v_add_u32 v5, {XC}, v5")
    A(f"v_add_u32 v6, {XC_TT}, v5")
    A("v_lshlrev_b32 v9, 2, v8")
    tr_addr(A, 4, 8, False)
    A("v_add_u32 v4, s27, v4")
    A("s_waitcnt lgkmcnt(0)")
    A("s_barrier")
    A("s_cmp_eq_u32 s24, 2")
    A("s_cbranch_scc1 L_k1_kv")
    A("s_cmp_eq_u32 s24, 3")
    A(f"s_cbranch_scc1 {done}")
    ACC = 64
    FR = [96, 108]
    def reads(ks):
        f = FR[ks & 1]
        so = 1024*(ks % R)
        A(f"ds_read_b64_tr_b16 {vr(f,2)}, v4 offset:{so}")
        A(f"ds_read_b64_tr_b16 {vr(f+2,2)}, v4 offset:{so+256}")
        A(f"ds_read_b128 {vr(f+4,4)}, v5 offset:{1056*ks}")
        A(f"ds_read_b128 {vr(f+8,4)}, v6 offset:{1056*ks}")
    A(f"s_waitcnt vmcnt({R-1})")
    reads(0)
    A(f"ds_read_b32 v22, v9 offset:{RSTD}")
    A(f"ds_read_b32 v20, v9 offset:{RSTD+128}")
    for ks in range(32):
        if ks + 1 < 32:
            issued = min(ks - 1 + R, 31)
            A(f"s_waitcnt vmcnt({issued-(ks+1)})")
            reads(ks+1)
            A("s_waitcnt lgkmcnt(4)")
        else:
            A("s_waitcnt lgkmcnt(0)")
        if ks + R < 32:
            A(f"s_add_u32 m0, s27, {1024*(ks % R)}")
        f = FR[ks & 1]
        c0 = "0" if ks == 0 else vr(ACC,16)
        c1 = "0" if ks == 0 else vr(ACC+16,16)
        A(f"v_mfma_f32_32x32x16_bf16 {vr(ACC,16)}, {vr(f,4)}, {vr(f+4,4)}, {c0}")
        if ks + R < 32:
            A(f"buffer_load_dwordx4 v3, s[12:15], s25 offen lds")
            A("s_add_u32 s25, s25, s26")
        A(f"v_mfma_f32_32x32x16_bf16 {vr(ACC+16,16)}, {vr(f,4)}, {vr(f+8,4)}, {c1}")
    A("v_lshlrev_b32 v2, 4, v1")
    A("s_cmp_eq_u32 s24, 0")
    A("s_cbranch_scc1 L_k1_q")
    B = 24
    for g in range(4):
        for i in range(2):
            A(f"v_lshlrev_b32 v{B+4*g+2*i}, 16, v{56+2*g+i}")
            A(f"v_and_b32 v{B+4*g+2*i+1}, 0xffff0000, v{56+2*g+i}")
    A(f"s_mov_b32 s50, {hex(f2u(LOG2E))}")
    A(f"s_mov_b32 s51, {hex(f2u(LOG2E))}")
    A(f"s_mul_i32 s6, s4, {2*86*1024}")
    A("s_lshl_b32 s7, s28, 11")
    A("s_add_u32 s6, s6, s7")
    A(f"s_add_u32 s6, s6, {WS_H}")
    A(f"s_add_u32 s7, s6, {86*1024}")
    for tt in range(2):
        out = 96 + 8*tt
        mish_pairs(A, ACC+16*tt, (22, 20)[tt], B, out, 40, 50)
        A(f"buffer_store_dwordx4 {vr(out,4)}, v2, s[20:23], s{6+tt} offen")
        A(f"buffer_store_dwordx4 {vr(out+4,4)}, v2, s[20:23], s{6+tt} offen offset:1024")
    A("s_endpgm")
    A("L_k1_q:")
    A(f"v_mul_f32 v22, {hex(f2u(0.25*LOG2E))}, v22")
    A(f"v_mul_f32 v20, {hex(f2u(0.25*LOG2E))}, v20")
    A("s_lshl_b32 s6, s4, 3")
    A("s_add_u32 s6, s6, s5")
    A("s_lshl_b32 s6, s6, 13")
    A("s_lshl_b32 s7, s28, 12")
    A("s_add_u32 s6, s6, s7")
    A(f"s_add_u32 s6, s6, {WS_Q}")
    A("s_nop 4")
    for tt in range(2):
        out = 96 + 8*tt
        rs = (22, 20)[tt]
        for i in range(8):
            a = ACC + 16*tt + 2*i
            A(f"v_pk_mul_f32 {vr(a,2)}, {vr(a,2)}, {vr(rs,2)} op_sel_hi:[1,0]")
        for i in range(8):
            a = ACC + 16*tt + 2*i
            A(f"v_cvt_pk_bf16_f32 v{out+i}, v{a}, v{a+1}")
        A(f"buffer_store_dwordx4 {vr(out,4)}, v2, s[20:23], s6 offen offset:{1024*tt}")
        A(f"buffer_store_dwordx4 {vr(out+4,4)}, v2, s[20:23], s6 offen offset:{2048+1024*tt}")
    A("s_endpgm")
    A("L_k1_kv:")
    A("s_lshr_b32 s6, s28, 1")
    A(f"s_mul_i32 s6, s6, {XC_TT}")
    A("s_and_b32 s7, s28, 1")
    A("s_lshl_b32 s7, s7, 8")
    A("s_add_u32 s6, s6, s7")
    A(f"s_add_u32 s6, s6, {XC}")
    A("v_lshrrev_b32 v10, 4, v1")
    A("v_and_b32 v11, 15, v1")
    A("v_mul_u32_u24 v5, 528, v10")
    A("v_lshl_add_u32 v5, v11, 4, v5")
    A("v_add_u32 v5, s6, v5")
    A("v_lshlrev_b32 v4, 8, v10")
    A("v_bfe_u32 v8, v1, 2, 2")
    A("v_lshl_add_u32 v4, v8, 5, v4")
    A("v_and_b32 v8, 3, v1")
    A("v_lshl_add_u32 v4, v8, 3, v4")
    A("v_add_u32 v4, s27, v4")
    A("s_lshl_b32 s6, s28, 6")
    A("v_lshl_add_u32 v8, v11, 2, s6")
    A("v_lshl_add_u32 v9, v10, 4, s6")
    A(f"ds_read_b32 v22, v8 offset:{RSTD}")
    A(f"ds_read_b128 v[12:15], v9 offset:{RSTD}")
    A("s_waitcnt vmcnt(0)")
    def kvreads(ks):
        f = FR[ks & 1]
        A(f"ds_read_b64_tr_b16 {vr(f,2)}, v4 offset:{1024*ks}")
        A(f"ds_read_b64_tr_b16 {vr(f+2,2)}, v4 offset:{1024*ks+128}")
        A(f"ds_read_b64_tr_b16 {vr(f+4,2)}, v4 offset:{16384+1024*ks}")
        A(f"ds_read_b64_tr_b16 {vr(f+6,2)}, v4 offset:{16384+1024*ks+128}")
        A(f"ds_read_b128 {vr(f+8,4)}, v5 offset:{2112*ks}")
    kvreads(0)
    for ks in range(16):
        if ks + 1 < 16:
            kvreads(ks+1)
            A("s_waitcnt lgkmcnt(5)")
        else:
            A("s_waitcnt lgkmcnt(0)")
        f = FR[ks & 1]
        A(f"v_mfma_f32_16x16x32_bf16 v[64:67], {vr(f,4)}, {vr(f+8,4)}, {'0' if ks == 0 else 'v[64:67]'}")
        A(f"v_mfma_f32_16x16x32_bf16 v[68:71], {vr(f+8,4)}, {vr(f+4,4)}, {'0' if ks == 0 else 'v[68:71]'}")
    A("s_lshl_b32 s6, s4, 2")
    A("s_add_u32 s6, s6, s28")
    A("s_lshr_b32 s7, s6, 1")
    A(f"s_mul_i32 s7, s7, {KVB}")
    A(f"s_add_u32 s7, s7, {WS_KV}")
    A("s_and_b32 s29, s6, 1")
    A("s_lshl_b32 s30, s29, 8")
    A("s_add_u32 s30, s30, s7")
    A("s_mul_i32 s31, s29, 544")
    A("s_add_u32 s31, s31, s7")
    A("s_add_u32 s31, s31, 1024")
    A("s_lshl_b32 s6, s6, 2")
    A(f"s_add_u32 s6, s6, {WS_KMAX}")
    A("v_and_b32 v16, 1, v10")
    A("v_lshrrev_b32 v17, 1, v10")
    A("v_lshlrev_b32 v17, 3, v17")
    A("v_lshl_add_u32 v17, v11, 4, v17")
    A("v_lshl_add_u32 v2, v16, 9, v17")
    A("v_mul_u32_u24 v3, 272, v16")
    A("v_add_u32 v3, v3, v17")
    for r in range(4):
        A(f"v_mul_f32 v{64+r}, v{64+r}, v22")
    for r in range(4):
        A(f"v_mul_f32 v{68+r}, v{68+r}, v{12+r}")
    A("v_cvt_pk_bf16_f32 v72, v64, v65")
    A("v_cvt_pk_bf16_f32 v73, v66, v67")
    A("v_cvt_pk_bf16_f32 v74, v68, v69")
    A("v_cvt_pk_bf16_f32 v75, v70, v71")
    A("buffer_store_dwordx2 v[72:73], v2, s[20:23], s30 offen")
    A("buffer_store_dwordx2 v[74:75], v3, s[20:23], s31 offen")
    A("v_and_b32 v16, 1, v1")
    A("v_mul_u32_u24 v16, 272, v16")
    A("v_bfe_u32 v17, v1, 1, 1")
    A("v_lshl_add_u32 v16, v17, 3, v16")
    A("v_mov_b32 v76, s46")
    A("v_mov_b32 v77, s46")
    A("buffer_store_dwordx2 v[76:77], v16, s[20:23], s31 offen offset:256")
    A("v_dot2_f32_bf16 v18, v72, v72, 0")
    A("v_dot2_f32_bf16 v18, v73, v73, v18")
    A("s_nop 2")
    A("v_mov_b32 v19, v18")
    A("s_nop 1")
    A("v_permlane32_swap_b32 v18, v19")
    A("s_nop 1")
    A("v_add_f32 v18, v18, v19")
    A("v_mov_b32 v19, v18")
    A("s_nop 1")
    A("v_permlane16_swap_b32 v18, v19")
    A("s_nop 1")
    A("v_add_f32 v18, v18, v19")
    for s in (8, 4, 2, 1):
        A("s_nop 1")
        A(f"v_max_f32_dpp v18, v18, v18 row_ror:{s} row_mask:0xf bank_mask:0xf")
    A("v_mov_b32 v19, 0")
    A("buffer_store_dword v18, v19, s[20:23], s6 offen")
    A(f"{done}:")
    A("s_endpgm")
    kernel_desc(A, name, 128)

K2_LDS = 136*1024
def wave_max(A, v, t):
    for s in (8, 4, 2, 1):
        A("s_nop 1")
        A(f"v_max_f32_dpp v{v}, v{v}, v{v} row_ror:{s} row_mask:0xf bank_mask:0xf")
    for sw in (16, 32):
        A(f"v_mov_b32 v{t}, v{v}")
        A("s_nop 1")
        A(f"v_permlane{sw}_swap_b32 v{v}, v{t}")
        A("s_nop 1")
        A(f"v_max_f32 v{v}, v{v}, v{t}")

Q, KF, VF, P, S, O = 8, [12, 16], [[20, 24], [28, 32]], 36, [48, 64], 80
def att_block(A, b, off):
    p = b & 1
    s = S[p]
    e = lambda r: A(f"v_exp_f32 v{s+r}, v{s+r}")
    c = lambda k: A(f"v_cvt_pk_bf16_f32 v{P+k}, v{s+2*k}, v{s+2*k+1}")
    A("s_waitcnt lgkmcnt(0)")
    A(f"v_mfma_f32_32x32x16_bf16 {vr(S[1-p],16)}, {vr(KF[1-p],4)}, {vr(Q,4)}, 0")
    A(f"ds_read_b128 {vr(KF[p],4)}, v2 offset:{off+2*KVB}")
    e(0); e(1); e(2); e(3); c(0)
    A(f"v_mfma_f32_32x32x16_bf16 {vr(O,16)}, {vr(VF[1-p][1],4)}, {vr(P+4,4)}, {vr(O,16)}")
    A(f"ds_read_b128 {vr(VF[1-p][0],4)}, v3 offset:{off+KVB}")
    A(f"ds_read_b128 {vr(VF[1-p][1],4)}, v3 offset:{off+KVB+544}")
    e(4); e(5); c(1); e(6); e(7); c(2); e(8); e(9); c(3); e(10); e(11)
    A(f"v_mfma_f32_32x32x16_bf16 {vr(O,16)}, {vr(VF[p][0],4)}, {vr(P,4)}, {vr(O,16)}")
    c(4); e(12); e(13); c(5); e(14); e(15); c(6); c(7)

def k2(A):
    name = "k2_kernel"
    kernel_head(A, name)
    done = "L_k2_done"
    wg_decode(A, done)
    A("s_load_dwordx2 s[44:45], s[0:1], 88")
    A("v_lshlrev_b32 v4, 4, v1")
    A("s_lshl_b32 s6, s3, 10")
    A(f"s_add_u32 s7, s6, {WS_KV}")
    A("s_waitcnt lgkmcnt(0)")
    srd(A, 20, 44, WS_BYTES)
    A("s_lshl_b32 s8, s4, 3")
    A("s_add_u32 s8, s8, s5")
    A("s_lshl_b32 s8, s8, 13")
    A("s_add_u32 s8, s8, s6")
    A(f"s_add_u32 s8, s8, {WS_Q}")
    A(f"buffer_load_dwordx4 {vr(Q,4)}, v4, s[20:23], s8 offen")
    A("v_lshlrev_b32 v5, 3, v1")
    A(f"s_mov_b32 s9, {WS_KMAX}")
    A(f"buffer_load_dwordx2 v[6:7], v5, s[20:23], s9 offen")
    for n in range(17):
        A(f"s_add_u32 m0, s6, {8192*n}")
        A("s_nop 0")
        A(f"buffer_load_dwordx4 v4, s[20:23], s7 offen lds")
        A("s_add_u32 s7, s7, 8192")
    A("v_mov_b32 v2, v4")
    A("v_and_b32 v5, 31, v1")
    A("v_lshlrev_b32 v3, 4, v5")
    A("v_cmp_lt_u32 vcc, 15, v5")
    A("v_mov_b32 v12, 256")
    A("s_nop 0")
    A("v_cndmask_b32 v3, v3, v12, vcc")
    A("v_subrev_u32 v5, 20, v5")
    A("v_cmp_gt_u32 vcc, 8, v5")
    A("s_nop 1")
    A("v_cndmask_b32_e64 v3, v3, 0, vcc")
    A("v_lshrrev_b32 v5, 5, v1")
    A("v_mul_u32_u24 v5, 272, v5")
    A("v_add3_u32 v3, v3, v5, 0")
    A("v_add_u32 v3, 1024, v3")
    for r in range(16):
        A(f"v_mov_b32 v{O+r}, 0")
    for r in range(4):
        A(f"v_mov_b32 v{P+4+r}, 0")
        A(f"v_mov_b32 v{VF[1][1]+r}, 0")
    A("s_waitcnt vmcnt(17)")
    A(f"v_dot2_f32_bf16 v5, v{Q}, v{Q}, 0")
    for r in range(1, 4):
        A(f"v_dot2_f32_bf16 v5, v{Q+r}, v{Q+r}, v5")
    A("v_max_f32 v6, v6, v7")
    A("s_nop 1")
    A("v_mov_b32 v7, v5")
    A("s_nop 1")
    A("v_permlane32_swap_b32 v5, v7")
    A("s_nop 1")
    A("v_add_f32 v5, v5, v7")
    wave_max(A, 5, 7)
    wave_max(A, 6, 7)
    A("v_mul_f32 v5, v5, v6")
    A(f"v_cmp_ge_f32 vcc, {hex(f2u(THRESH2))}, v5")
    A("s_waitcnt vmcnt(0)")
    A("s_barrier")
    A("s_cbranch_vccz L_k2_slow")
    A(f"ds_read_b128 {vr(KF[0],4)}, v2")
    A(f"ds_read_b128 {vr(KF[1],4)}, v2 offset:{KVB}")
    A(f"ds_read_b128 {vr(VF[0][0],4)}, v3")
    A(f"ds_read_b128 {vr(VF[0][1],4)}, v3 offset:544")
    A("s_waitcnt lgkmcnt(3)")
    A(f"v_mfma_f32_32x32x16_bf16 {vr(S[0],16)}, {vr(KF[0],4)}, {vr(Q,4)}, 0")
    A("s_mov_b32 s10, 8")
    A("s_nop 7")
    U = 8
    A(".p2align 6")
    A("L_k2_loop:")
    for b in range(U):
        att_block(A, b, b*KVB)
    A(f"v_add_u32 v2, {U*KVB}, v2")
    A(f"v_add_u32 v3, {U*KVB}, v3")
    A("s_sub_u32 s10, s10, 1")
    A("s_cmp_lg_u32 s10, 0")
    A("s_cbranch_scc1 L_k2_loop")
    A(f"v_mfma_f32_32x32x16_bf16 {vr(O,16)}, {vr(VF[1][1],4)}, {vr(P+4,4)}, {vr(O,16)}")
    A("L_k2_fin:")
    A("s_and_b32 s6, s3, 1")
    A("s_lshl_b32 s7, s4, 1")
    A("s_add_u32 s6, s6, s7")
    A("s_lshl_b32 s6, s6, 5")
    A("s_lshl_b32 s7, s5, 2")
    A("s_add_u32 s6, s6, s7")
    A("s_lshr_b32 s7, s3, 1")
    A("s_add_u32 s6, s6, s7")
    A("s_lshl_b32 s6, s6, 10")
    A(f"s_add_u32 s6, s6, {WS_O}")
    A("v_cmp_lt_u32 vcc, 31, v1")
    A("s_nop 4")
    A(f"v_cndmask_b32 v5, v{O+8}, v{O+12}, vcc")
    A("v_rcp_f32 v6, v5")
    A("s_nop 0")
    for i in range(4):
        A(f"v_pk_mul_f32 {vr(O+2*i,2)}, {vr(O+2*i,2)}, v[6:7] op_sel_hi:[1,0]")
    for i in range(4):
        A(f"v_cvt_pk_bf16_f32 v{P+i}, v{O+2*i}, v{O+2*i+1}")
    A(f"buffer_store_dwordx4 {vr(P,4)}, v4, s[20:23], s6 offen")
    A(f"{done}:")
    A("s_endpgm")
    A("L_k2_slow:")
    A(f"v_mov_b32 v6, {hex(f2u(-3.0e38))}")
    A("s_mov_b32 s10, 64")
    A("L_k2_sloop:")
    A(f"ds_read_b128 {vr(KF[0],4)}, v2")
    A(f"ds_read_b128 {vr(VF[0][0],4)}, v3")
    A(f"ds_read_b128 {vr(VF[0][1],4)}, v3 offset:544")
    A("s_waitcnt lgkmcnt(0)")
    s = S[0]
    A(f"v_mfma_f32_32x32x16_bf16 {vr(s,16)}, {vr(KF[0],4)}, {vr(Q,4)}, 0")
    A(f"v_add_u32 v2, {KVB}, v2")
    A(f"v_add_u32 v3, {KVB}, v3")
    A("s_nop 15")
    A(f"v_max3_f32 v5, v{s}, v{s+1}, v6")
    for r in range(2, 16, 2):
        A(f"v_max3_f32 v5, v{s+r}, v{s+r+1}, v5")
    A("v_mov_b32 v7, v5")
    A("s_nop 1")
    A("v_permlane32_swap_b32 v5, v7")
    A("s_nop 1")
    A("v_max_f32 v5, v5, v7")
    A("v_sub_f32 v7, v6, v5")
    A("v_exp_f32 v7, v7")
    A("v_mov_b32 v6, v5")
    for r in range(16):
        A(f"v_sub_f32 v{s+r}, v{s+r}, v6")
    for r in range(16):
        A(f"v_exp_f32 v{s+r}, v{s+r}")
    for r in range(16):
        A(f"v_mul_f32 v{O+r}, v{O+r}, v7")
    for k in range(8):
        A(f"v_cvt_pk_bf16_f32 v{P+k}, v{s+2*k}, v{s+2*k+1}")
    A("s_nop 1")
    A(f"v_mfma_f32_32x32x16_bf16 {vr(O,16)}, {vr(VF[0][0],4)}, {vr(P,4)}, {vr(O,16)}")
    A(f"v_mfma_f32_32x32x16_bf16 {vr(O,16)}, {vr(VF[0][1],4)}, {vr(P+4,4)}, {vr(O,16)}")
    A("s_sub_u32 s10, s10, 1")
    A("s_cmp_lg_u32 s10, 0")
    A("s_cbranch_scc1 L_k2_sloop")
    A("s_branch L_k2_fin")
    kernel_desc(A, name, 96)

K3_R = 16
K3_LDS = 8*K3_R*1024
def k3(A):
    name = "k3_kernel"
    kernel_head(A, name)
    done = "L_k3_done"
    wg_decode(A, done)
    A("s_load_dwordx2 s[32:33], s[0:1], 0")
    A("s_load_dwordx2 s[34:35], s[0:1], 32")
    A("s_load_dwordx4 s[36:39], s[0:1], 64")
    A("s_load_dwordx2 s[44:45], s[0:1], 88")
    A("s_and_b32 s24, s3, 1")
    A("s_bfe_u32 s25, s3, 0x10001")
    A("s_lshr_b32 s26, s3, 2")
    A(f"s_mul_i32 s27, s3, {K3_R*1024}")
    A("s_lshl_b32 s6, s5, 7")
    A("s_lshl_b32 s7, s24, 6")
    A("s_add_u32 s28, s6, s7")
    A("v_lshrrev_b32 v3, 2, v1")
    A("v_lshlrev_b32 v3, 10, v3")
    A("v_and_b32 v8, 3, v1")
    A("v_lshl_add_u32 v3, v8, 4, v3")
    A("v_add_u32 v3, s28, v3")
    A("v_lshlrev_b32 v2, 4, v1")
    tr_addr(A, 4, 8, True)
    A("v_add_u32 v4, s27, v4")
    A(f"s_mul_i32 s46, s26, {43*16384}")
    A("s_lshl_b32 s6, s4, 1")
    A("s_add_u32 s6, s6, s25")
    A(f"s_mul_i32 s47, s6, {86*1024}")
    A(f"s_mul_i32 s7, s26, {43*1024}")
    A("s_add_u32 s47, s47, s7")
    A(f"s_add_u32 s47, s47, {WS_H}")
    A("s_lshl_b32 s48, s26, 18")
    A("s_lshl_b32 s49, s6, 15")
    A("s_lshl_b32 s7, s26, 14")
    A("s_add_u32 s49, s49, s7")
    A(f"s_add_u32 s49, s49, {WS_O}")
    A("s_lshl_b32 s6, s6, 5")
    A("v_and_b32 v8, 31, v1")
    A("v_add_u32 v8, s6, v8")
    A("v_lshlrev_b32 v8, 10, v8")
    A("v_add_u32 v8, s28, v8")
    A("s_lshl_b32 s7, s26, 5")
    A("v_add_u32 v8, s7, v8")
    A("v_lshrrev_b32 v9, 5, v1")
    A("v_lshl_add_u32 v5, v9, 3, v8")
    A("v_lshl_add_u32 v6, v9, 4, v8")
    A("s_waitcnt lgkmcnt(0)")
    srd(A, 8, 32, 2097152)
    srd(A, 12, 36, 1376*1024)
    srd(A, 16, 34, 512*1024)
    srd(A, 20, 44, WS_BYTES)
    srd(A, 40, 38, 2097152)
    A("buffer_load_dwordx2 v[10:11], v5, s[8:11], 0 offen")
    A("buffer_load_dwordx2 v[12:13], v5, s[8:11], 0 offen offset:16")
    N = 59
    R = K3_R
    AF = 64
    WF = [16, 20]
    ACC = 32
    def issue(k):
        A(f"s_add_u32 m0, s27, {1024*(k % R)}")
        if k < 43:
            A(f"buffer_load_dwordx4 {vr(AF+4*(k % R),4)}, v2, s[20:23], s47 offen")
            A(f"buffer_load_dwordx4 v3, s[12:15], s46 offen lds")
            A("s_add_u32 s47, s47, 1024")
            A("s_add_u32 s46, s46, 16384")
        else:
            A(f"buffer_load_dwordx4 {vr(AF+4*(k % R),4)}, v2, s[20:23], s49 offen")
            A(f"buffer_load_dwordx4 v3, s[16:19], s48 offen lds")
            A("s_add_u32 s49, s49, 1024")
            A("s_add_u32 s48, s48, 16384")
    def reads(k):
        f = WF[k & 1]
        A(f"ds_read_b64_tr_b16 {vr(f,2)}, v4 offset:{1024*(k % R)}")
        A(f"ds_read_b64_tr_b16 {vr(f+2,2)}, v4 offset:{1024*(k % R)+512}")
    for k in range(R):
        issue(k)
    A(f"s_waitcnt vmcnt({2*(R-1)})")
    reads(0)
    for k in range(N):
        if k + 1 < N:
            issued = min(k - 1 + R, N - 1)
            A(f"s_waitcnt vmcnt({2*(issued-(k+1))})")
            reads(k+1)
            A("s_waitcnt lgkmcnt(2)")
        else:
            A("s_waitcnt lgkmcnt(0)")
        A(f"v_mfma_f32_32x32x16_bf16 {vr(ACC,16)}, {vr(WF[k&1],4)}, {vr(AF+4*(k % R),4)}, {'0' if k == 0 else vr(ACC,16)}")
        if k + R < N:
            issue(k + R)
    A("s_xor_b32 s6, s3, 4")
    A(f"s_mul_i32 s6, s6, {K3_R*1024}")
    A("v_add_u32 v7, s6, v2")
    A("v_add_u32 v9, s27, v2")
    A("v_lshlrev_b32 v16, 16, v10")
    A("v_and_b32 v17, 0xffff0000, v10")
    A("v_lshlrev_b32 v18, 16, v11")
    A("v_and_b32 v19, 0xffff0000, v11")
    A("v_lshlrev_b32 v20, 16, v12")
    A("v_and_b32 v21, 0xffff0000, v12")
    A("v_lshlrev_b32 v22, 16, v13")
    A("v_and_b32 v23, 0xffff0000, v13")
    A("s_barrier")
    A("s_cmp_eq_u32 s26, 0")
    A("s_cbranch_scc1 L_k3_lo")
    A("s_nop 1")
    A(f"ds_write_b128 v7, {vr(ACC,4)}")
    A(f"ds_write_b128 v7, {vr(ACC+4,4)} offset:1024")
    for r in range(8):
        A(f"v_add_f32 v{16+r}, v{16+r}, v{ACC+8+r}")
    A("s_branch L_k3_j")
    A("L_k3_lo:")
    A("s_nop 1")
    A(f"ds_write_b128 v7, {vr(ACC+8,4)}")
    A(f"ds_write_b128 v7, {vr(ACC+12,4)} offset:1024")
    for r in range(8):
        A(f"v_add_f32 v{16+r}, v{16+r}, v{ACC+r}")
    A("L_k3_j:")
    A("s_waitcnt lgkmcnt(0)")
    A("s_barrier")
    A("ds_read_b128 v[24:27], v9")
    A("ds_read_b128 v[28:31], v9 offset:1024")
    A("s_waitcnt lgkmcnt(0)")
    for r in range(8):
        A(f"v_add_f32 v{16+r}, v{16+r}, v{24+r}")
    for i in range(4):
        A(f"v_cvt_pk_bf16_f32 v{24+i}, v{16+2*i}, v{17+2*i}")
    A("s_nop 1")
    A("v_permlane32_swap_b32 v24, v26")
    A("v_permlane32_swap_b32 v25, v27")
    A("s_nop 1")
    A("buffer_store_dwordx4 v[24:27], v6, s[40:43], 0 offen")
    A(f"{done}:")
    A("s_endpgm")
    kernel_desc(A, name, 128)

A = Asm()
hdr = HEADER
hdr += f"; @launch kernel=k1_kernel grid=(256,1,1) block=(512,1,1) lds={K1_LDS}\n"
hdr += f"; @launch kernel=k2_kernel grid=(256,1,1) block=(512,1,1) lds={K2_LDS}\n"
hdr += f"; @launch kernel=k3_kernel grid=(256,1,1) block=(512,1,1) lds={K3_LDS}\n"
for i in range(int(opts.get("extra", 0))):
    hdr += f"; @launch kernel=nop_kernel grid=(256,1,1) block=(512,1,1) lds=0\n"
hdr += '.amdgcn_target "amdgcn-amd-amdhsa--gfx950"\n'
k1(A); k2(A); k3(A)
if int(opts.get("extra", 0)):
    kernel_head(A, "nop_kernel"); A("s_endpgm"); kernel_desc(A, "nop_kernel", 8)
open(opts.get("out", "m1.s"), "w").write(hdr + A.text())
```

```python
import sys, math
from asmlib import *

opts = dict(a.split("=") for a in sys.argv[1:] if "=" in a)
LOG2E = 1.4426950408889634
WS_KV, WS_O, WS_H, WS_FL = 0x200000, 0x300000, 0x600000, 0x80000
FL_E, FL_KV, FL_H = WS_FL, WS_FL + 0x1000, WS_FL + 0x2000
WS_BYTES = 0x1000000
WS_TS = 0xF00000
KVB = 2112
XC_TT = 64*528
XC = 32768
R1 = 7
RING0 = XC + 2*XC_TT
FSLOT = 135168
MISC = 159744
LDS_BYTES = 163840
assert RING0 + 8*R1*1024 <= MISC
CH1 = 22
THRESH2 = -1.0 if opts.get("slow") == "1" else 3600.0
TS = opts.get("ts") == "1"
SPIN = 200000

LANE = 1
Q, KF, VF, P, S, O = 8, [12, 16], [[20, 24], [28, 32]], 36, [48, 64], 80
vK, vV, vL16 = 2, 3, 4
vTR0, vTR1, vDW = 44, 45, 46
vOUT, vXO = 47, 7
GACC = 96
WF = 128
HF = [136, 140]
XR = 144
WO = 148
NV = 216
vTSr, vTSc = 212, 213

A = Asm()

def stamp(i):
    if TS:
        A("s_memrealtime s[70:71]")
        A("s_memtime s[72:73]")
        A("s_waitcnt lgkmcnt(0)")
        A(f"v_writelane_b32 v{vTSr}, s70, {i}")
        A(f"v_writelane_b32 v{vTSc}, s72, {i}")
def stamp_out():
    if TS:
        A("s_waitcnt vmcnt(0)")
        stamp(15)
        A("s_lshl_b32 s6, s2, 3")
        A("s_add_u32 s6, s6, s3")
        A("s_lshl_b32 s6, s6, 7")
        A(f"s_add_u32 s6, s6, {WS_TS}")
        A(f"v_lshlrev_b32 v2, 3, v{LANE}")
        A(f"v_cmp_gt_u32 vcc, 16, v{LANE}")
        A("s_and_saveexec_b64 s[30:31], vcc")
        A(f"buffer_store_dwordx2 v[{vTSr}:{vTSc}], v2, s[20:23], s6 offen")
        A("s_mov_b64 exec, s[30:31]")

def tr_addr(d, t, permuted):
    A(f"v_lshrrev_b32 v{d}, 5, v1")
    A(f"v_lshlrev_b32 v{d}, {8 if permuted else 9}, v{d}")
    A(f"v_bfe_u32 v{t}, v1, 4, 1")
    A(f"v_lshl_add_u32 v{d}, v{t}, 5, v{d}")
    A(f"v_bfe_u32 v{t}, v1, 2, 2")
    A(f"v_lshl_add_u32 v{d}, v{t}, 6, v{d}")
    A(f"v_and_b32 v{t}, 3, v1")
    A(f"v_lshl_add_u32 v{d}, v{t}, 3, v{d}")

def mish_pairs(acc, rs, bias, out, T, sL2E):
    for q in range(4):
        h = [acc+4*q, acc+4*q+2]
        u = [T, T+2]; d = [T+4, T+6]
        for i in range(2):
            A(f"v_pk_fma_f32 {vr(h[i],2)}, {vr(h[i],2)}, {vr(rs,2)}, {vr(bias+4*q+2*i,2)} op_sel_hi:[1,0,1]")
        for i in range(2):
            A(f"v_pk_mul_f32 {vr(u[i],2)}, {vr(h[i],2)}, {sr(sL2E,2)}")
        for i in range(2):
            A(f"v_exp_f32 v{u[i]}, v{u[i]}")
            A(f"v_exp_f32 v{u[i]+1}, v{u[i]+1}")
        A(f"v_pk_add_f32 {vr(d[0],2)}, {vr(u[0],2)}, 2.0 op_sel_hi:[1,0]")
        A(f"v_pk_add_f32 {vr(d[1],2)}, {vr(u[1],2)}, 2.0 op_sel_hi:[1,0]")
        for i in range(2):
            A(f"v_pk_fma_f32 {vr(d[i],2)}, {vr(d[i],2)}, {vr(u[i],2)}, 2.0 op_sel_hi:[1,1,0]")
        for i in range(2):
            A(f"v_rcp_f32 v{d[i]}, v{d[i]}")
            A(f"v_rcp_f32 v{d[i]+1}, v{d[i]+1}")
        for i in range(2):
            A(f"v_pk_fma_f32 {vr(d[i],2)}, {vr(d[i],2)}, -2.0, 1.0 op_sel_hi:[1,0,0]")
        for i in range(2):
            A(f"v_pk_mul_f32 {vr(h[i],2)}, {vr(h[i],2)}, {vr(d[i],2)}")
        for i in range(2):
            A(f"v_cvt_pk_bf16_f32 v{out+2*q+i}, v{h[i]}, v{h[i]+1}")

def wave_max(v, t):
    for s in (8, 4, 2, 1):
        A("s_nop 1")
        A(f"v_max_f32_dpp v{v}, v{v}, v{v} row_ror:{s} row_mask:0xf bank_mask:0xf")
    for sw in (16, 32):
        A(f"v_mov_b32 v{t}, v{v}")
        A("s_nop 1")
        A(f"v_permlane{sw}_swap_b32 v{v}, v{t}")
        A("s_nop 1")
        A(f"v_max_f32 v{v}, v{v}, v{t}")

name = NAME + "_kernel"
kernel_head(A, name)
done = "L_done"
A("s_cmp_ge_u32 s2, 256")
A(f"s_cbranch_scc1 {done}")
A("s_load_dwordx8 s[32:39], s[0:1], 0")
A("s_load_dwordx2 s[40:41], s[0:1], 32")
A("s_load_dwordx8 s[44:51], s[0:1], 48")
A("s_load_dwordx4 s[52:55], s[0:1], 80")
A("v_lshrrev_b32 v2, 6, v0")
A("v_and_b32 v1, 63, v0")
A("s_and_b32 s6, s2, 7")
A("v_readfirstlane_b32 s3, v2")
A("s_lshr_b32 s7, s2, 3")
if TS:
    A(f"v_mov_b32 v{vTSr}, 0")
    A(f"v_mov_b32 v{vTSc}, 0")
m = opts.get("map", "a")
if m == "a":
    A("s_and_b32 s4, s7, 7")
    A("s_lshl_b32 s4, s4, 2")
    A("s_and_b32 s5, s6, 3")
    A("s_add_u32 s4, s4, s5")
    A("s_lshr_b32 s5, s7, 3")
    A("s_lshl_b32 s5, s5, 1")
    A("s_lshr_b32 s6, s6, 2")
    A("s_add_u32 s5, s5, s6")
elif m == "g":
    A("s_lshr_b32 s4, s7, 3")
    A("s_lshl_b32 s4, s4, 3")
    A("s_add_u32 s4, s4, s6")
    A("s_and_b32 s5, s7, 7")
elif m == "j":
    A("s_mov_b32 s4, s7")
    A("s_mov_b32 s5, s6")
A("s_mul_i32 s6, s5, 6")
A("s_mul_i32 s7, s5, 5")
A("s_add_u32 s7, s7, 3")
A("s_min_u32 s6, s6, s7")
A("s_add_u32 s28, s6, s3")
A("s_sub_u32 s28, s28, 2")
A("s_mov_b32 s24, 1")
A("s_cmp_lt_u32 s3, 2")
A("s_cselect_b32 s24, 0, s24")
A("s_cselect_b32 s28, s3, s28")
A("s_cmp_lg_u32 s3, 7")
A("s_cbranch_scc1 L_role")
A("s_cmp_lt_u32 s5, 3")
A("s_cbranch_scc1 L_role")
A("s_cmp_eq_u32 s5, 3")
A("s_cselect_b32 s24, 3, 2")
A("s_sub_u32 s28, s5, 4")
A("L_role:")
A("s_lshl_b32 s6, s4, 6")
A("s_lshl_b32 s7, s3, 3")
A("s_add_u32 s6, s6, s7")
A("v_lshrrev_b32 v2, 3, v1")
A("v_add_u32 v2, s6, v2")
A("v_lshlrev_b32 v2, 10, v2")
A("v_and_b32 v8, 7, v1")
A("v_lshl_add_u32 v2, v8, 4, v2")
A("v_lshrrev_b32 v9, 3, v1")
A("v_add_u32 v9, s7, v9")
A("v_and_b32 v7, 31, v9")
A("v_lshlrev_b32 v7, 4, v7")
A("v_mul_u32_u24 v8, 528, v8")
A("v_add_u32 v7, v7, v8")
A("s_lshr_b32 s6, s3, 2")
A(f"s_mul_i32 s6, s6, {XC_TT}")
A(f"s_add_u32 s6, s6, {XC}")
A("v_add_u32 v7, s6, v7")
A("v_lshlrev_b32 v9, 2, v9")
A(f"v_add_u32 v9, {MISC}, v9")
A(f"v_lshlrev_b32 v{vL16}, 4, v1")
A("s_and_b32 s6, s3, 1")
A("s_lshl_b32 s7, s4, 1")
A("s_add_u32 s69, s6, s7")
A("s_lshl_b32 s6, s69, 5")
A("s_lshl_b32 s7, s5, 2")
A("s_add_u32 s6, s6, s7")
A("s_lshr_b32 s7, s3, 1")
A("s_add_u32 s6, s6, s7")
A("s_lshl_b32 s6, s6, 10")
A(f"s_add_u32 s68, s6, {WS_O}")
for r in range(4):
    A(f"v_mov_b32 v{12+r}, -1")
A("s_waitcnt lgkmcnt(0)")
stamp(0)
srd(A, 8, 32, 2097152)
X = 24
for i in range(8):
    A(f"buffer_load_dwordx4 {vr(X+4*i,4)}, v2, s[8:11], 0 offen offset:{128*i}")
srd(A, 20, 54, WS_BYTES)
A(f"s_load_dword s56, s[54:55], {FL_E}")
A(f"buffer_store_dwordx4 v[12:15], v{vL16}, s[20:23], s68 offen sc1")
A("s_cmp_eq_u32 s24, 0")
A("s_cselect_b32 s12, s34, s44")
A("s_cselect_b32 s13, s35, s45")
A(f"s_mov_b32 s14, {512*2752}")
A(f"s_cselect_b32 s14, {512*1024}, s14")
A("s_mov_b32 s26, 2752")
A("s_cselect_b32 s26, 1024, s26")
A("s_mov_b32 s16, s46")
A("s_mov_b32 s17, s47")
A("s_mov_b32 s18, 2752")
A("s_cmp_eq_u32 s24, 2")
A("s_cselect_b32 s12, s36, s12")
A("s_cselect_b32 s13, s37, s13")
A("s_cselect_b32 s14, 16384, s14")
A("s_cselect_b32 s16, s38, s16")
A("s_cselect_b32 s17, s39, s17")
A("s_cselect_b32 s18, 16384, s18")
A("s_mov_b32 s15, 0x00020000")
A("s_mov_b32 s19, 0x00020000")
A("s_sub_u32 s27, 7, s3")
A(f"s_mul_i32 s27, s27, {R1*1024}")
A(f"s_add_u32 s27, s27, {RING0}")
A("s_lshl_b32 s6, s28, 6")
A("s_lshl_b32 s7, s5, 7")
A("s_cmp_eq_u32 s24, 0")
A("s_cselect_b32 s7, s7, 0")
A("s_add_u32 s6, s6, s7")
A("v_lshrrev_b32 v3, 2, v1")
A("v_mul_lo_u32 v3, v3, s26")
A("v_and_b32 v8, 3, v1")
A("v_lshl_add_u32 v3, v8, 4, v3")
A("v_add_u32 v3, s6, v3")
A("s_lshl_b32 s26, s26, 4")
A("s_mov_b32 s25, 0")
A("s_cmp_eq_u32 s24, 2")
A("s_cbranch_scc1 L_pre_kv")
A("s_cmp_eq_u32 s24, 3")
A("s_cbranch_scc1 L_pre_idle")
R = R1
A("v_lshrrev_b32 v8, 5, v1")
A("v_lshlrev_b32 v8, 3, v8")
A("s_lshl_b32 s6, s28, 6")
A("v_add_u32 v8, s6, v8")
for g in range(4):
    A(f"buffer_load_dwordx2 {vr(56+2*g,2)}, v8, s[16:19], 0 offen offset:{16*g}")
for k in range(R):
    A(f"s_add_u32 m0, s27, {1024*k}")
    A("s_nop 0")
    A("buffer_load_dwordx4 v3, s[12:15], s25 offen lds")
    A("s_add_u32 s25, s25, s26")
A(f"s_waitcnt vmcnt({5+R})")
A("s_branch L_ln")
A("L_pre_kv:")
A("s_setprio 2")
for k in range(16):
    A(f"s_mov_b32 m0, {1024*k}")
    A("s_nop 0")
    A(f"buffer_load_dwordx4 v{vL16}, s[12:15], s25 offen lds")
    A(f"s_mov_b32 m0, {16384+1024*k}")
    A("s_nop 0")
    A(f"buffer_load_dwordx4 v{vL16}, s[16:19], s25 offen lds")
    A("s_add_u32 s25, s25, 1024")
A("s_waitcnt vmcnt(33)")
A("s_branch L_ln")
A("L_pre_idle:")
A("s_waitcnt vmcnt(1)")
A("L_ln:")
stamp(1)
A("s_mov_b32 s57, 0x3f803f80")
A("s_mov_b32 s58, 0x00003f80")
A("s_mov_b32 s59, 0x3f800000")
for r in range(32):
    a = 18 + (r & 3)
    A(f"v_dot2_f32_bf16 v{a}, v{X+r}, s57, {'0' if r < 4 else 'v%d' % a}")
A("s_nop 2")
A("v_add_f32 v18, v18, v19")
A("v_add_f32 v20, v20, v21")
A("v_add_f32 v18, v18, v20")
def red8(v):
    for m_ in ("quad_perm:[1,0,3,2]", "quad_perm:[2,3,0,1]", "row_half_mirror"):
        A("s_nop 1")
        A(f"v_add_f32_dpp v{v}, v{v}, v{v} {m_} row_mask:0xf bank_mask:0xf")
red8(18)
A(f"v_mul_f32 v22, {hex(f2u(1/512))}, v18")
T = 10
for r in range(34):
    if r < 32:
        t = T + 2*(r & 3)
        A(f"v_dot2_f32_bf16 v{t}, v{X+r}, s58, v22 neg_lo:[0,0,1]")
        A(f"v_dot2_f32_bf16 v{t+1}, v{X+r}, s59, v22 neg_lo:[0,0,1]")
    else:
        A("s_nop 1")
    if r >= 2:
        q = r - 2
        t = T + 2*(q & 3)
        A(f"v_cvt_pk_bf16_f32 v{X+q}, v{t}, v{t+1}")
        if q & 3 == 3:
            i = q >> 2
            A(f"ds_write_b128 v7, {vr(X+4*i,4)} offset:{8*528*i}")
for r in range(32):
    a = 18 + (r & 3)
    A(f"v_dot2_f32_bf16 v{a}, v{X+r}, v{X+r}, {'0' if r < 4 else 'v%d' % a}")
A("s_nop 2")
A("v_add_f32 v18, v18, v19")
A("v_add_f32 v20, v20, v21")
A("v_add_f32 v18, v18, v20")
red8(18)
A(f"v_mov_b32 v19, {hex(f2u(1e-5))}")
A(f"v_fmac_f32 v19, {hex(f2u(1/512))}, v18")
A("v_rsq_f32 v19, v19")
A("s_nop 0")
A("ds_write_b32 v9, v19")
A("v_lshrrev_b32 v5, 5, v1")
A("v_mul_u32_u24 v5, 528, v5")
A("v_and_b32 v8, 31, v1")
A("v_lshl_add_u32 v5, v8, 4, v5")
A(f"v_add_u32 v5, {XC}, v5")
A(f"v_add_u32 v6, {XC_TT}, v5")
A("v_lshlrev_b32 v9, 2, v8")
A(f"v_add_u32 v9, {MISC}, v9")
tr_addr(10, 8, False)
A("v_add_u32 v10, s27, v10")
A("s_waitcnt lgkmcnt(0)")
A("s_mul_i32 s56, s56, 0x9E3779B1")
A("s_add_u32 s56, s56, 0x85EBCA6B")
A("s_cmp_eq_u32 s24, 3")
A("s_cbranch_scc0 L_b1")
A("s_waitcnt vmcnt(0)")
A("L_b1:")
A("s_barrier")
stamp(2)
A("s_cmp_eq_u32 s24, 2")
A("s_cbranch_scc1 L_kv")
A("s_cmp_eq_u32 s24, 3")
A("s_cbranch_scc1 L_b2")
ACC = 64
FR = [96, 108]
def reads(ks):
    f = FR[ks & 1]
    so = 1024*(ks % R)
    A(f"ds_read_b64_tr_b16 {vr(f,2)}, v10 offset:{so}")
    A(f"ds_read_b64_tr_b16 {vr(f+2,2)}, v10 offset:{so+256}")
    A(f"ds_read_b128 {vr(f+4,4)}, v5 offset:{1056*ks}")
    A(f"ds_read_b128 {vr(f+8,4)}, v6 offset:{1056*ks}")
A(f"s_waitcnt vmcnt({R-1})")
reads(0)
A("ds_read_b32 v22, v9")
A("ds_read_b32 v20, v9 offset:128")
for ks in range(32):
    if ks + 1 < 32:
        issued = min(ks - 1 + R, 31)
        A(f"s_waitcnt vmcnt({issued-(ks+1)})")
        reads(ks+1)
        A("s_waitcnt lgkmcnt(4)")
    else:
        A("s_waitcnt lgkmcnt(0)")
    if ks + R < 32:
        A(f"s_add_u32 m0, s27, {1024*(ks % R)}")
    f = FR[ks & 1]
    c0 = "0" if ks == 0 else vr(ACC,16)
    c1 = "0" if ks == 0 else vr(ACC+16,16)
    A(f"v_mfma_f32_32x32x16_bf16 {vr(ACC,16)}, {vr(f,4)}, {vr(f+4,4)}, {c0}")
    if ks + R < 32:
        A("buffer_load_dwordx4 v3, s[12:15], s25 offen lds")
        A("s_add_u32 s25, s25, s26")
    A(f"v_mfma_f32_32x32x16_bf16 {vr(ACC+16,16)}, {vr(f,4)}, {vr(f+8,4)}, {c1}")
stamp(3)
A("s_cmp_eq_u32 s24, 0")
A("s_cbranch_scc1 L_q")
B = 24
for g in range(4):
    for i in range(2):
        A(f"v_lshlrev_b32 v{B+4*g+2*i}, 16, v{56+2*g+i}")
        A(f"v_and_b32 v{B+4*g+2*i+1}, 0xffff0000, v{56+2*g+i}")
A(f"s_mov_b32 s30, {hex(f2u(LOG2E))}")
A(f"s_mov_b32 s31, {hex(f2u(LOG2E))}")
A(f"s_mul_i32 s6, s4, {2*86*1024}")
A("s_lshl_b32 s7, s28, 11")
A("s_add_u32 s6, s6, s7")
A(f"s_add_u32 s6, s6, {WS_H}")
A(f"s_add_u32 s7, s6, {86*1024}")
for tt in range(2):
    out = 96 + 8*tt
    mish_pairs(ACC+16*tt, (22, 20)[tt], B, out, 40, 30)
    A(f"buffer_store_dwordx4 {vr(out,4)}, v{vL16}, s[20:23], s{6+tt} offen sc1")
    A(f"buffer_store_dwordx4 {vr(out+4,4)}, v{vL16}, s[20:23], s{6+tt} offen offset:1024 sc1")
A("s_lshl_b32 s6, s4, 6")
A("s_add_u32 s6, s6, s28")
A("s_lshl_b32 s6, s6, 2")
A(f"s_add_u32 s29, s6, {FL_H}")
A("s_branch L_b2")
A("L_q:")
A(f"v_mul_f32 v22, {hex(f2u(0.25*LOG2E))}, v22")
A(f"v_mul_f32 v20, {hex(f2u(0.25*LOG2E))}, v20")
A(f"v_add_u32 v2, s27, v{vL16}")
A(f"s_mov_b32 s6, {FL_KV}")
A(f"buffer_load_dwordx4 v[24:27], v{vL16}, s[20:23], s6 offen sc1")
A("s_nop 6")
for tt in range(2):
    out = 96 + 8*tt
    rs = (22, 20)[tt]
    for i in range(8):
        a = ACC + 16*tt + 2*i
        A(f"v_pk_mul_f32 {vr(a,2)}, {vr(a,2)}, {vr(rs,2)} op_sel_hi:[1,0]")
    for i in range(8):
        a = ACC + 16*tt + 2*i
        A(f"v_cvt_pk_bf16_f32 v{out+i}, v{a}, v{a+1}")
    A(f"ds_write_b128 v2, {vr(out,4)} offset:{1024*tt}")
    A(f"ds_write_b128 v2, {vr(out+4,4)} offset:{2048+1024*tt}")
A(f"s_mov_b32 s7, {SPIN}")
A("L_pollkv:")
A("s_waitcnt vmcnt(0)")
A("v_cmp_ne_u32 vcc, s56, v24")
A("v_cmp_ne_u32 s[30:31], s56, v26")
A("s_or_b64 vcc, vcc, s[30:31]")
A("s_cbranch_vccz L_kvok")
A("s_sub_u32 s7, s7, 1")
A("s_cmp_eq_u32 s7, 0")
A("s_cbranch_scc1 L_kvok")
A("s_sleep 2")
A(f"buffer_load_dwordx4 v[24:27], v{vL16}, s[20:23], s6 offen sc1")
A("s_branch L_pollkv")
A("L_kvok:")
stamp(4)
A(f"s_mul_i32 s6, s3, {CH1//2*1024}")
A(f"s_add_u32 s7, s6, {WS_KV}")
for n in range(CH1//2):
    A(f"s_add_u32 m0, s6, {1024*n}")
    A("s_nop 0")
    A(f"buffer_load_dwordx4 v{vL16}, s[20:23], s7 offen sc1 lds")
    A("s_add_u32 s7, s7, 1024")
A("v_max_f32 v25, v25, v27")
wave_max(25, 24)
A(f"v_mov_b32 v24, {MISC+256}")
A("ds_write_b32 v24, v25")
A("s_waitcnt vmcnt(0) lgkmcnt(0)")
A("s_branch L_b2")
A("L_kv:")
A("s_lshr_b32 s6, s28, 1")
A(f"s_mul_i32 s6, s6, {XC_TT}")
A("s_and_b32 s7, s28, 1")
A("s_lshl_b32 s7, s7, 8")
A("s_add_u32 s6, s6, s7")
A(f"s_add_u32 s6, s6, {XC}")
A("v_lshrrev_b32 v10, 4, v1")
A("v_and_b32 v11, 15, v1")
A("v_mul_u32_u24 v5, 528, v10")
A("v_lshl_add_u32 v5, v11, 4, v5")
A("v_add_u32 v5, s6, v5")
A("v_lshlrev_b32 v6, 8, v10")
A("v_bfe_u32 v8, v1, 2, 2")
A("v_lshl_add_u32 v6, v8, 5, v6")
A("v_and_b32 v8, 3, v1")
A("v_lshl_add_u32 v6, v8, 3, v6")
A("s_lshl_b32 s6, s28, 6")
A(f"s_add_u32 s6, s6, {MISC}")
A("v_lshl_add_u32 v8, v11, 2, s6")
A("v_lshl_add_u32 v9, v10, 4, s6")
A("ds_read_b32 v22, v8")
A("ds_read_b128 v[12:15], v9")
A("s_waitcnt vmcnt(0)")
KFR = [96, 108, 120]
def kvreads(ks):
    f = KFR[ks % 3]
    A(f"ds_read_b64_tr_b16 {vr(f,2)}, v6 offset:{1024*ks}")
    A(f"ds_read_b64_tr_b16 {vr(f+2,2)}, v6 offset:{1024*ks+128}")
    A(f"ds_read_b64_tr_b16 {vr(f+4,2)}, v6 offset:{16384+1024*ks}")
    A(f"ds_read_b64_tr_b16 {vr(f+6,2)}, v6 offset:{16384+1024*ks+128}")
    A(f"ds_read_b128 {vr(f+8,4)}, v5 offset:{2112*ks}")
kvreads(0); kvreads(1)
for ks in range(16):
    A(f"s_waitcnt lgkmcnt({5 if ks < 15 else 0})")
    if ks + 2 < 16:
        kvreads(ks+2)
    f = KFR[ks % 3]
    A(f"v_mfma_f32_16x16x32_bf16 v[64:67], {vr(f,4)}, {vr(f+8,4)}, {'0' if ks == 0 else 'v[64:67]'}")
    A(f"v_mfma_f32_16x16x32_bf16 v[68:71], {vr(f+8,4)}, {vr(f+4,4)}, {'0' if ks == 0 else 'v[68:71]'}")
stamp(3)
A("s_lshl_b32 s6, s4, 2")
A("s_add_u32 s6, s6, s28")
A("s_lshr_b32 s7, s6, 1")
A(f"s_mul_i32 s7, s7, {KVB}")
A(f"s_add_u32 s7, s7, {WS_KV}")
A("s_and_b32 s29, s6, 1")
A("s_lshl_b32 s30, s29, 8")
A("s_add_u32 s30, s30, s7")
A("s_mul_i32 s31, s29, 544")
A("s_add_u32 s31, s31, s7")
A("s_add_u32 s31, s31, 1024")
A("s_lshl_b32 s6, s6, 3")
A(f"s_add_u32 s6, s6, {FL_KV}")
A("v_and_b32 v16, 1, v10")
A("v_lshrrev_b32 v17, 1, v10")
A("v_lshlrev_b32 v17, 3, v17")
A("v_lshl_add_u32 v17, v11, 4, v17")
A("v_lshl_add_u32 v2, v16, 9, v17")
A("v_mul_u32_u24 v3, 272, v16")
A("v_add_u32 v3, v3, v17")
for r in range(4):
    A(f"v_mul_f32 v{64+r}, v{64+r}, v22")
for r in range(4):
    A(f"v_mul_f32 v{68+r}, v{68+r}, v{12+r}")
A("v_cvt_pk_bf16_f32 v72, v64, v65")
A("v_cvt_pk_bf16_f32 v73, v66, v67")
A("v_cvt_pk_bf16_f32 v74, v68, v69")
A("v_cvt_pk_bf16_f32 v75, v70, v71")
A("buffer_store_dwordx2 v[72:73], v2, s[20:23], s30 offen sc1")
A("buffer_store_dwordx2 v[74:75], v3, s[20:23], s31 offen sc1")
A("v_and_b32 v16, 1, v1")
A("v_mul_u32_u24 v16, 272, v16")
A("v_bfe_u32 v17, v1, 1, 1")
A("v_lshl_add_u32 v16, v17, 3, v16")
A("v_mov_b32 v76, s57")
A("v_mov_b32 v77, s57")
A("v_cmp_gt_u32 vcc, 4, v1")
A("s_and_saveexec_b64 s[34:35], vcc")
A("buffer_store_dwordx2 v[76:77], v16, s[20:23], s31 offen offset:256 sc1")
A("s_mov_b64 exec, s[34:35]")
A("v_dot2_f32_bf16 v19, v72, v72, 0")
A("v_dot2_f32_bf16 v19, v73, v73, v19")
A("s_nop 2")
for sw in (32, 16):
    A("v_mov_b32 v18, v19")
    A("s_nop 1")
    A(f"v_permlane{sw}_swap_b32 v18, v19")
    A("s_nop 1")
    A("v_add_f32 v19, v18, v19")
for s in (8, 4, 2, 1):
    A("s_nop 1")
    A(f"v_max_f32_dpp v19, v19, v19 row_ror:{s} row_mask:0xf bank_mask:0xf")
A("v_mov_b32 v18, s56")
A("v_mov_b32 v16, 0")
A("v_cmp_eq_u32 vcc, 0, v1")
A("s_and_saveexec_b64 s[34:35], vcc")
A("s_waitcnt vmcnt(0)")
A("buffer_store_dwordx2 v[18:19], v16, s[20:23], s6 offen sc1")
A("s_mov_b64 exec, s[34:35]")
A("s_setprio 0")
stamp(4)

A("L_b2:")
A(f"v_mov_b32 v{vK}, v{vL16}")
A("v_and_b32 v5, 31, v1")
A(f"v_lshlrev_b32 v{vV}, 4, v5")
A("v_cmp_lt_u32 vcc, 15, v5")
A("v_mov_b32 v12, 256")
A("v_cmp_ne_u32 s[30:31], 28, v5")
A(f"v_cndmask_b32 v{vV}, v{vV}, v12, vcc")
A("v_cmp_lt_u32 vcc, 16, v5")
A("v_mov_b32 v12, 0x40000")
A("s_and_b64 vcc, vcc, s[30:31]")
A("v_lshrrev_b32 v6, 5, v1")
A(f"v_cndmask_b32 v{vV}, v{vV}, v12, vcc")
A("v_mul_u32_u24 v12, 272, v6")
A(f"v_add3_u32 v{vV}, v{vV}, v12, 0")
A(f"v_add_u32 v{vV}, 1024, v{vV}")
A("s_lshr_b32 s60, s3, 1")
tr_addr(vTR1, 12, True)
A(f"v_lshl_add_u32 v{vTR1}, v6, 8, v{vTR1}")
A("s_mul_i32 s61, s3, 3072")
A(f"s_add_u32 s61, s61, {FSLOT}")
A("s_lshl_b32 s62, s3, 11")
A(f"v_add_u32 v{vTR0}, s61, v{vTR1}")
A(f"v_add_u32 v{vTR1}, s62, v{vTR1}")
A("v_bfe_u32 v12, v1, 2, 2")
A("v_lshl_add_u32 v12, v6, 2, v12")
A(f"v_lshlrev_b32 v{vDW}, 10, v12")
A("v_bfe_u32 v12, v1, 4, 1")
A(f"v_lshl_add_u32 v{vDW}, v12, 6, v{vDW}")
A("v_and_b32 v12, 3, v1")
A(f"v_lshl_add_u32 v{vDW}, v12, 4, v{vDW}")
A("s_lshl_b32 s6, s5, 7")
A(f"v_add_u32 v{vDW}, s6, v{vDW}")
A("s_lshl_b32 s7, s69, 5")
A("v_add_u32 v5, s7, v5")
A("v_lshlrev_b32 v5, 10, v5")
A("s_lshl_b32 s7, s60, 5")
A("s_add_u32 s6, s6, s7")
A("v_add_u32 v5, s6, v5")
A(f"v_lshl_add_u32 v{vXO}, v6, 3, v5")
A(f"v_lshl_add_u32 v{vOUT}, v6, 4, v5")
srd(A, 12, 48, 1376*1024)
srd(A, 16, 40, 512*1024)
A(f"s_mul_i32 s6, s69, {86*1024}")
A(f"s_add_u32 s6, s6, {WS_H}")
A("s_add_u32 s64, s54, s6")
A("s_addc_u32 s65, s55, 0")
A(f"s_mov_b32 s66, {86*1024}")
A("s_mov_b32 s67, 0x00020000")
A(f"s_mul_i32 s25, s60, {22*16384}")
A(f"s_mul_i32 s26, s60, {22*1024}")
A("s_lshl_b32 s63, s60, 17")
for r in range(16):
    A(f"v_mov_b32 v{O+r}, 0")
for r in range(4):
    A(f"v_mov_b32 v{P+4+r}, 0")
    A(f"v_mov_b32 v{VF[1][1]+r}, 0")
A("s_lshr_b32 s6, s3, 2")
A("s_sub_u32 s6, 7, s6")
A(f"s_mul_i32 s6, s6, {R1*1024}")
A("s_and_b32 s7, s3, 3")
A("s_lshl_b32 s7, s7, 10")
A("s_add_u32 s6, s6, s7")
A(f"s_add_u32 s6, s6, {RING0}")
A(f"v_add_u32 v5, s6, v{vL16}")
A(f"v_mov_b32 v6, {MISC+256}")
stamp(5)
A("s_barrier")
stamp(6)
A(f"ds_read_b128 {vr(Q,4)}, v5")
A("ds_read_b32 v6, v6")
A(f"ds_read_b128 {vr(KF[0],4)}, v{vK}")
A(f"ds_read_b128 {vr(KF[1],4)}, v{vK} offset:{KVB}")
A(f"ds_read_b128 {vr(VF[0][0],4)}, v{vV}")
A(f"ds_read_b128 {vr(VF[0][1],4)}, v{vV} offset:544")

NREST = 14
A("s_lshl_b32 s6, s3, 10")
A(f"s_add_u32 s6, s6, {CH1*1024}")
A(f"s_add_u32 s7, s6, {WS_KV}")
for n in range(NREST):
    A(f"s_add_u32 m0, s6, {8192*n}")
    A("s_nop 0")
    A(f"buffer_load_dwordx4 v{vL16}, s[20:23], s7 offen sc1 lds")
    A("s_add_u32 s7, s7, 8192")
A(f"buffer_load_dwordx2 {vr(XR,2)}, v{vXO}, s[8:11], 0 offen")
A(f"buffer_load_dwordx2 {vr(XR+2,2)}, v{vXO}, s[8:11], 0 offen offset:16")
A("s_lshr_b32 s6, s4, 2")
A("s_lshl_b32 s6, s6, 3")
A("s_add_u32 s6, s6, s3")
A("s_mul_i32 s7, s6, 22")
A("v_add_u32 v48, s7, v1")
A("v_lshlrev_b32 v48, 10, v48")
A("s_lshl_b32 s7, s6, 3")
A("v_add_u32 v49, s7, v1")
A("v_lshlrev_b32 v49, 10, v49")
A("s_lshl_b32 s7, s5, 7")
A("v_cmp_gt_u32 vcc, 22, v1")
A("s_and_saveexec_b64 s[34:35], vcc")
A(f"buffer_load_dword v{WF}, v48, s[12:15], s7 offen")
A("v_cmp_gt_u32 vcc, 8, v1")
A("s_and_b64 exec, exec, vcc")
A(f"buffer_load_dword v{WF+1}, v49, s[16:19], s7 offen")
A("s_mov_b64 exec, s[34:35]")
NY = NREST + 4
srd(A, 72 if not TS else 76, 52, 256)
DBG = 72 if not TS else 76
A("s_cmp_eq_u32 s3, 1")
A("s_cbranch_scc0 L_noat")
A("v_mov_b32 v48, 1")
A("v_mov_b32 v49, 0")
A("v_cmp_eq_u32 vcc, 0, v1")
A("s_and_saveexec_b64 s[34:35], vcc")
A(f"buffer_atomic_add v48, v49, s[{DBG}:{DBG+3}], 0 offen sc1")
A("s_mov_b64 exec, s[34:35]")
A("L_noat:")
A("s_waitcnt lgkmcnt(3)")
A(f"v_mfma_f32_32x32x16_bf16 {vr(S[0],16)}, {vr(KF[0],4)}, {vr(Q,4)}, 0")
A(f"v_dot2_f32_bf16 v5, v{Q}, v{Q}, 0")
for r in range(1, 4):
    A(f"v_dot2_f32_bf16 v5, v{Q+r}, v{Q+r}, v5")
A("s_nop 2")
A(f"v_mov_b32 v{P}, v5")
A("s_nop 1")
A(f"v_permlane32_swap_b32 v5, v{P}")
A("s_nop 1")
A(f"v_add_f32 v5, v5, v{P}")
wave_max(5, P)
A("v_mul_f32 v5, v5, v6")
A(f"v_cmp_ge_f32 vcc, {hex(f2u(THRESH2))}, v5")
A("s_cbranch_vccz L_slow")

def hflag(tag):
    A("s_cmp_eq_u32 s24, 1")
    A(f"s_cbranch_scc0 L_nohf{tag}")
    A("v_mov_b32 v5, s56")
    A("v_mov_b32 v6, 0")
    A("v_cmp_eq_u32 vcc, 0, v1")
    A("s_and_saveexec_b64 s[34:35], vcc")
    A(f"s_waitcnt vmcnt({NY})")
    A("buffer_store_dword v5, v6, s[20:23], s29 offen sc1")
    A("s_mov_b64 exec, s[34:35]")
    A(f"L_nohf{tag}:")

def hpoll_issue():
    A("s_lshl_b32 s6, s4, 8")
    A(f"s_add_u32 s6, s6, {FL_H}")
    A("v_min_u32 v5, 42, v1")
    A("v_lshlrev_b32 v5, 2, v5")
    A("buffer_load_dword v6, v5, s[20:23], s6 offen sc1")
def hpoll_check(tag):
    A(f"s_mov_b32 s7, {SPIN}")
    A(f"L_ph{tag}:")
    A("s_waitcnt vmcnt(0)")
    A("v_cmp_ne_u32 vcc, s56, v6")
    A(f"s_cbranch_vccz L_hok{tag}")
    A("s_sub_u32 s7, s7, 1")
    A("s_cmp_eq_u32 s7, 0")
    A(f"s_cbranch_scc1 L_hok{tag}")
    A("s_sleep 2")
    A("buffer_load_dword v6, v5, s[20:23], s6 offen sc1")
    A(f"s_branch L_ph{tag}")
    A(f"L_hok{tag}:")

def g_dma(slot, wo):
    sb = ("s61", "s62")[slot]
    d, so = ("s[16:19]", "s63") if wo else ("s[12:15]", "s25")
    return [f"s_mov_b32 m0, {sb}",
            f"s_add_u32 s31, {so}, 8192",
            f"buffer_load_dwordx4 v{vDW}, {d}, {so} offen lds",
            f"s_add_u32 m0, {sb}, 1024",
            f"s_add_u32 {so}, {so}, 16384",
            f"buffer_load_dwordx4 v{vDW}, {d}, s31 offen lds"]
def g_h(slot):
    return [f"buffer_load_dwordx4 {vr(HF[slot],4)}, v{vL16}, s[64:67], s26 offen sc1",
            "s_add_u32 s26, s26, 1024"]
def g_tr(slot, dst):
    a = (vTR0, vTR1)[slot]
    return [f"ds_read_b64_tr_b16 {vr(dst,2)}, v{a}",
            f"ds_read_b64_tr_b16 {vr(dst+2,2)}, v{a} offset:1024",
            f"ds_read_b64_tr_b16 {vr(dst+4,2)}, v{a} offset:256",
            f"ds_read_b64_tr_b16 {vr(dst+6,2)}, v{a} offset:1280"]
def g_mfma(nt, w, h, first=False):
    acc = vr(GACC+16*nt, 16)
    return f"v_mfma_f32_32x32x16_bf16 {acc}, {vr(w+4*nt,4)}, {vr(h,4)}, {'0' if first else acc}"

def att_block(b, off, ins=None, att=True):
    ins = ins or {}
    def x(k):
        for l in ins.get(k, []):
            A(l)
    p = b & 1
    s = S[p]
    if not att:
        x('pre'); A("s_waitcnt lgkmcnt(0)"); x(0); x(1); x(2); x(3); x(4)
        return
    e = lambda r: A(f"v_exp_f32 v{s+r}, v{s+r}")
    c = lambda k: A(f"v_cvt_pk_bf16_f32 v{P+k}, v{s+2*k}, v{s+2*k+1}")
    x('pre')
    A("s_waitcnt lgkmcnt(0)")
    A(f"v_mfma_f32_32x32x16_bf16 {vr(S[1-p],16)}, {vr(KF[1-p],4)}, {vr(Q,4)}, 0")
    A(f"ds_read_b128 {vr(KF[p],4)}, v{vK} offset:{off+2*KVB}")
    x(0)
    e(0); e(1); e(2); e(3); c(0)
    A(f"v_mfma_f32_32x32x16_bf16 {vr(O,16)}, {vr(VF[1-p][1],4)}, {vr(P+4,4)}, {vr(O,16)}")
    A(f"ds_read_b128 {vr(VF[1-p][0],4)}, v{vV} offset:{off+KVB}")
    A(f"ds_read_b128 {vr(VF[1-p][1],4)}, v{vV} offset:{off+KVB+544}")
    x(1)
    e(4); e(5); c(1); e(6); e(7)
    x(2)
    c(2); e(8); e(9); c(3); e(10); e(11)
    A(f"v_mfma_f32_32x32x16_bf16 {vr(O,16)}, {vr(VF[p][0],4)}, {vr(P,4)}, {vr(O,16)}")
    x(3)
    c(4); e(12); e(13); c(5); e(14)
    x(4)
    e(15); c(6); A("s_nop 0") if False else None; c(7)

def adv(n, att=True):
    if att:
        A(f"v_add_u32 v{vK}, {n*KVB}, v{vK}")
        A(f"v_add_u32 v{vV}, {n*KVB}, v{vV}")

def prio_hi(tag):
    if opts.get("prio", "1") != "0":
        A("s_cmp_lt_u32 s3, 4")
        A(f"s_cbranch_scc1 L_pr{tag}")
        A("s_setprio 1")
        A(f"L_pr{tag}:")
def prio_lo():
    if opts.get("prio", "1") != "0":
        A("s_setprio 0")

def f_section(tag, att):
    hpoll_check(tag)
    for sl in range(2):
        for l in g_dma(sl, False) + g_h(sl):
            A(l)
    att_block(8, 0, att=att)
    att_block(9, KVB, att=att)
    adv(2, att)
    def pair(b, off, sl, first=False, wo=False, lo=False):
        att_block(b, off, {'pre': ["s_waitcnt vmcnt(3)"], 1: g_tr(sl, WF)}, att)
        nxt = g_dma(sl, wo)
        hl = g_h(sl) if not wo else []
        if lo and att: prio_lo()
        att_block(b+1, off+KVB, {0: nxt[:3], 1: nxt[3:], 2: [g_mfma(0, WF, HF[sl], first)],
                                 4: [g_mfma(1, WF, HF[sl], first)] + hl}, att)
    if att: prio_hi(tag+"a")
    pair(10, 0, 0, first=True)
    pair(12, 2*KVB, 1)
    adv(4, att)
    A("s_mov_b32 s30, 9")
    A(".p2align 6")
    A(f"L_floop{tag}:")
    if att: prio_hi(tag+"b")
    pair(14, 0, 0)
    if att:
        A("s_bitcmp1_b32 s30, 0")
        A(f"s_cbranch_scc0 L_keep{tag}")
        prio_lo()
        A(f"L_keep{tag}:")
    att_block(16, 2*KVB, {'pre': ["s_waitcnt vmcnt(3)"], 1: g_tr(1, WF)}, att)
    if att: prio_hi(tag+"c")
    nxt = g_dma(1, False)
    att_block(17, 3*KVB, {0: nxt[:3], 1: nxt[3:], 2: [g_mfma(0, WF, HF[1])], 4: [g_mfma(1, WF, HF[1])] + g_h(1)}, att)
    adv(4, att)
    A("s_sub_u32 s30, s30, 1")
    A("s_cmp_lg_u32 s30, 0")
    A(f"s_cbranch_scc1 L_floop{tag}")
    att_block(50, 0, {'pre': ["s_waitcnt vmcnt(3)"], 1: g_tr(0, WF)}, att)
    nxt = g_dma(0, True)
    att_block(51, KVB, {0: nxt[:3], 1: nxt[3:], 2: [g_mfma(0, WF, HF[0])], 4: [g_mfma(1, WF, HF[0])]}, att)
    att_block(52, 2*KVB, {'pre': ["s_waitcnt vmcnt(2)"], 1: g_tr(1, WF)}, att)
    nxt = g_dma(1, True)
    if att: prio_lo()
    att_block(53, 3*KVB, {0: nxt[:3], 1: nxt[3:], 2: [g_mfma(0, WF, HF[1])], 4: [g_mfma(1, WF, HF[1])]}, att)
    if att: prio_hi(tag+"d")
    for i in range(8):
        ins = {'pre': [], 1: []}
        if 1 <= i <= 6:
            nxt = g_dma((i-1) & 1, True)
            ins[0] = nxt[:3] + nxt[3:]
            ins[1] = ["s_waitcnt vmcnt(2)"]
        else:
            ins[1] = [f"s_waitcnt vmcnt({2 if i == 0 else 0})"]
        ins[1] += g_tr(i & 1, WO + 8*i)
        if i == 6 and att: prio_lo()
        if i == 7 and att: prio_hi(tag+"e")
        att_block(54+i, (4+i)*KVB, ins, att)
    att_block(62, 12*KVB, att=att)
    att_block(63, 13*KVB, att=att)

stamp(7)
prio_hi("0")
for b in range(8):
    if b == 2:
        hflag("f")
    if b == 7:
        prio_lo()
        hpoll_issue()
    att_block(b, b*KVB)
adv(8)
A("s_waitcnt vmcnt(0)")
A("s_barrier")
stamp(8)
f_section("f", True)
A("s_setprio 0")
A("s_nop 0")
A(f"v_mfma_f32_32x32x16_bf16 {vr(O,16)}, {vr(VF[1][1],4)}, {vr(P+4,4)}, {vr(O,16)}")
A("s_nop 0")
A("L_fin:")
stamp(9)
A("s_lshl_b32 s6, s69, 15")
A("s_lshl_b32 s7, s60, 13")
A("s_add_u32 s6, s6, s7")
A(f"s_add_u32 s30, s6, {WS_O}")
A("s_add_u32 s31, s30, 4096")
srd(A, 12, 50, 2097152)
A("v_cmp_lt_u32 vcc, 31, v1")
A("s_nop 3")
A(f"v_cndmask_b32 v5, v{O+8}, v{O+12}, vcc")
A("v_rcp_f32 v6, v5")
A("s_nop 0")
for i in range(4):
    A(f"v_pk_mul_f32 {vr(O+2*i,2)}, {vr(O+2*i,2)}, v[6:7] op_sel_hi:[1,0]")
for i in range(4):
    A(f"v_cvt_pk_bf16_f32 v{P+i}, v{O+2*i}, v{O+2*i+1}")
A(f"buffer_store_dwordx4 {vr(P,4)}, v{vL16}, s[20:23], s68 offen sc1")
OF = 48
def oloads():
    for i in range(8):
        A(f"buffer_load_dwordx4 {vr(OF+4*i,4)}, v{vL16}, s[20:23], s{30+(i>>2)} offen offset:{1024*(i&3)} sc1")
A("s_waitcnt lgkmcnt(0)")
A("s_barrier")
stamp(10)
oloads()
for i in range(4):
    A(f"v_lshlrev_b32 v{16+2*i}, 16, v{XR+i}")
    A(f"v_and_b32 v{17+2*i}, 0xffff0000, v{XR+i}")
A("s_mul_i32 s6, s3, 6144")
A(f"v_add_u32 v8, s6, v{vL16}")
A("s_and_b32 s6, s3, 1")
A("s_mul_i32 s6, s6, 6144")
A(f"v_add_u32 v9, s6, v{vL16}")
A(f"s_mov_b32 s7, {SPIN}")
A("L_po:")
A("s_waitcnt vmcnt(0)")
A(f"v_max3_u32 v5, v{OF}, v{OF+1}, v{OF+2}")
for r in range(3, 31, 2):
    A(f"v_max3_u32 v5, v{OF+r}, v{OF+r+1}, v5")
A(f"v_max_u32 v5, v{OF+31}, v5")
A("v_cmp_eq_u32 vcc, -1, v5")
A("s_cbranch_vccz L_ook")
A("s_sub_u32 s7, s7, 1")
A("s_cmp_eq_u32 s7, 0")
A("s_cbranch_scc1 L_ook")
oloads()
A("s_branch L_po")
A("L_ook:")
stamp(11)
for i in range(8):
    for nt in range(2):
        A(g_mfma(nt, WO+8*i, OF+4*i))
for k in range(1, 4):
    A(f"s_cmp_eq_u32 s60, {k}")
    A(f"s_cbranch_scc1 L_red{k}")
for k in range(4):
    A(f"L_red{k}:")
    A("s_nop 9")
    for o in range(4):
        if o == k: continue
        sl = (k - o - 1) & 3
        A(f"ds_write_b128 v9, {vr(GACC+8*o,4)} offset:{o*12288 + sl*2048}")
        A(f"ds_write_b128 v9, {vr(GACC+8*o+4,4)} offset:{o*12288 + sl*2048 + 1024}")
    for i in range(4):
        A(f"v_pk_add_f32 {vr(16+2*i,2)}, {vr(16+2*i,2)}, {vr(GACC+8*k+2*i,2)}")
    if k < 3:
        A("s_branch L_redj")
A("L_redj:")
A("s_waitcnt lgkmcnt(0)")
A("s_barrier")
stamp(12)
for sl in range(3):
    A(f"ds_read_b128 {vr(48+8*sl,4)}, v8 offset:{2048*sl}")
    A(f"ds_read_b128 {vr(52+8*sl,4)}, v8 offset:{2048*sl+1024}")
for sl in range(3):
    A(f"s_waitcnt lgkmcnt({4-2*sl})")
    for i in range(4):
        A(f"v_pk_add_f32 {vr(16+2*i,2)}, {vr(16+2*i,2)}, {vr(48+8*sl+2*i,2)}")
for i in range(4):
    A(f"v_cvt_pk_bf16_f32 v{24+i}, v{16+2*i}, v{17+2*i}")
A("s_nop 1")
A("v_permlane32_swap_b32 v24, v26")
A("v_permlane32_swap_b32 v25, v27")
A("s_nop 1")
A(f"buffer_store_dwordx4 v[24:27], v{vOUT}, s[12:15], 0 offen")
stamp_out()
A("s_or_b32 s6, s2, s3")
A("s_cmp_lg_u32 s6, 0")
A(f"s_cbranch_scc1 {done}")
A("v_mov_b32 v6, 0")
A(f"s_mov_b32 s7, {SPIN}")
A("L_pe:")
A(f"buffer_load_dword v5, v6, s[{DBG}:{DBG+3}], 0 offen sc1")
A("s_waitcnt vmcnt(0)")
A("v_cmp_gt_u32 vcc, 0x100, v5")
A("s_cbranch_vccz L_eok")
A("s_sub_u32 s7, s7, 1")
A("s_cmp_lg_u32 s7, 0")
A("s_cbranch_scc1 L_pe")
A("L_eok:")
A("v_mov_b32 v5, s56")
A(f"s_mov_b32 s6, {FL_E}")
A("buffer_store_dword v5, v6, s[20:23], s6 offen sc1")
A(f"{done}:")
A("s_endpgm")

def slow_blocks(tag, n):
    s = S[0]
    A(f"s_mov_b32 s30, {n}")
    A(f"L_sl{tag}:")
    A(f"ds_read_b128 {vr(KF[0],4)}, v{vK}")
    A(f"ds_read_b128 {vr(VF[0][0],4)}, v{vV}")
    A(f"ds_read_b128 {vr(VF[0][1],4)}, v{vV} offset:544")
    A("s_waitcnt lgkmcnt(0)")
    A(f"v_mfma_f32_32x32x16_bf16 {vr(s,16)}, {vr(KF[0],4)}, {vr(Q,4)}, 0")
    adv(1)
    A("s_nop 15")
    m, t, al = KF[1], KF[1]+1, KF[1]+2
    A(f"v_max3_f32 v{t}, v{s}, v{s+1}, v{m}")
    for r in range(2, 16, 2):
        A(f"v_max3_f32 v{t}, v{s+r}, v{s+r+1}, v{t}")
    A(f"v_mov_b32 v{al}, v{t}")
    A("s_nop 1")
    A(f"v_permlane32_swap_b32 v{t}, v{al}")
    A("s_nop 1")
    A(f"v_max_f32 v{t}, v{t}, v{al}")
    A(f"v_sub_f32 v{al}, v{m}, v{t}")
    A(f"v_exp_f32 v{al}, v{al}")
    A(f"v_mov_b32 v{m}, v{t}")
    for r in range(16):
        A(f"v_sub_f32 v{s+r}, v{s+r}, v{m}")
    for r in range(16):
        A(f"v_exp_f32 v{s+r}, v{s+r}")
    for r in range(16):
        A(f"v_mul_f32 v{O+r}, v{O+r}, v{al}")
    for k in range(8):
        A(f"v_cvt_pk_bf16_f32 v{P+k}, v{s+2*k}, v{s+2*k+1}")
    A("s_nop 1")
    A(f"v_mfma_f32_32x32x16_bf16 {vr(O,16)}, {vr(VF[0][0],4)}, {vr(P,4)}, {vr(O,16)}")
    A(f"v_mfma_f32_32x32x16_bf16 {vr(O,16)}, {vr(VF[0][1],4)}, {vr(P+4,4)}, {vr(O,16)}")
    A("s_sub_u32 s30, s30, 1")
    A("s_cmp_lg_u32 s30, 0")
    A(f"s_cbranch_scc1 L_sl{tag}")
A("L_slow:")
A("s_waitcnt lgkmcnt(0)")
A("s_nop 15")
A(f"v_mov_b32 v{KF[1]}, {hex(f2u(-3.0e38))}")
hflag("s")
slow_blocks("a", 8)
A("s_waitcnt vmcnt(0)")
A("s_barrier")
slow_blocks("b", 56)
hpoll_issue()
f_section("s", False)
A("s_waitcnt lgkmcnt(0)")
A("s_branch L_fin")
kernel_desc(A, name, NV)

hdr = HEADER + f"; @launch grid=(256,1,1) block=(512,1,1) lds={LDS_BYTES}\n"
hdr += '.amdgcn_target "amdgcn-amd-amdhsa--gfx950"\n'
open(opts.get("out", "f1.s"), "w").write(hdr + A.text())
```
